```python
import torch

def _softmax(x, axis=-1):
    return torch.softmax(x, dim=axis)
def _gelu(x):
    return torch.nn.functional.gelu(x, approximate="tanh")
def _silu(x):
    return torch.nn.functional.silu(x)
def _sigmoid(x):
    return torch.sigmoid(x)
def _layernorm(x, axis=-1, eps=1e-5):
    m = x.mean(dim=axis, keepdim=True)
    v = x.var(dim=axis, keepdim=True, unbiased=False)
    return (x - m) / torch.sqrt(v + eps)
def _scatter_add(tgt, idx, src, axis=0):
    return tgt.clone().index_add_(axis, idx, src)
def _segment_sum(src, seg, n):
    out = torch.zeros((n,) + src.shape[1:], dtype=src.dtype)
    return out.index_add_(0, seg, src)
def _pad(x, pw):
    flat = tuple(v for pair in reversed(pw) for v in pair)
    return torch.nn.functional.pad(x, flat)

kernel_name = 'parallel_sum__sliding_block__glu_gated_bilinear__prompt'

def setup_inputs():

    _w = (lambda a: (lambda t: t.to(torch.bfloat16) if t.is_floating_point() else t)(torch.as_tensor(a)))
    def _A_setup():
        B, S, D = 1, 2048, 640
        return {
            "x": _w((lambda *s: torch.randn(*s, dtype=torch.bfloat16) * 0.05)(B, S, D)),
            "wqkv": _w((lambda *s: torch.randn(*s, dtype=torch.bfloat16) * 0.05)(D, 3 * D)),
            "wo": _w((lambda *s: torch.randn(*s, dtype=torch.bfloat16) * 0.05)(D, D)),
        }
    _A_in = _A_setup()

    def _B_setup():
        B, S, D, F = 1, 2048, 640, 1728
        return {
            "x": _w((lambda *s: torch.randn(*s, dtype=torch.bfloat16) * 0.05)(B, S, D)),
            "w_gate": _w((lambda *s: torch.randn(*s, dtype=torch.bfloat16) * 0.8)(D, F) * (D ** -0.5)),
            "w_up": _w((lambda *s: torch.randn(*s, dtype=torch.bfloat16) * 0.8)(D, F) * (D ** -0.5)),
            "w_down": _w((lambda *s: torch.randn(*s, dtype=torch.bfloat16) * 0.8)(F, D) * (F ** -0.5)),
        }
    _B_in = _B_setup()

    return {
        "A_x": _A_in["x"],
        "A_wqkv": _A_in["wqkv"],
        "A_wo": _A_in["wo"],
        "B_x": _B_in["x"],
        "B_w_gate": _B_in["w_gate"],
        "B_w_up": _B_in["w_up"],
        "B_w_down": _B_in["w_down"],
    }

def reference(A_x, A_wqkv, A_wo, B_x, B_w_gate, B_w_up, B_w_down):
    def _A_ref(x, wqkv, wo):
        B, S, D = x.shape
        H = 32; Dh = D // H; W = 256
        qkv = (lambda x, *d: x.permute(*d))((x @ wqkv).reshape(B, S, 3, H, Dh), 2, 0, 3, 1, 4)
        q, k, v = qkv[0], qkv[1], qkv[2]
        scores = torch.einsum("bhqd,bhkd->bhqk", q, k) * (Dh ** -0.5)
        idx = torch.arange(S)
        mask = (idx[:, None] - idx[None, :] >= 0) & (idx[:, None] - idx[None, :] < W)
        scores = torch.where(mask[None, None], scores, -1e9)
        p = _softmax(scores, axis=-1)
        o = torch.einsum("bhqk,bhkd->bhqd", p, v)
        return (lambda x, *d: x.permute(*d))(o, 0, 2, 1, 3).reshape(B, S, D) @ wo

    def _B_ref(x, w_gate, w_up, w_down):
        g = torch.einsum("bsd,df->bsf", x, w_gate)
        u = torch.einsum("bsd,df->bsf", x, w_up)
        h = g * u
        return torch.einsum("bsf,fd->bsd", h, w_down)

    x = A_x
    xn = _layernorm(x, axis=-1)
    return x + _A_ref(xn, A_wqkv, A_wo) + _B_ref(xn, B_w_gate, B_w_up, B_w_down)
```

```python
class Asm:
    def __init__(self):
        self.lines = []
        self.vmq = []
        self.lgq = []
        self.nlabel = 0
        self.ninstr = 0
    def raw(self, s):
        self.lines.append(s)
    def c(self, s):
        self.lines.append("  ; " + s)
    def i(self, s):
        self.lines.append("  " + s)
        self.ninstr += 1
    def label(self, name):
        self.lines.append(name + ":")
    def newlabel(self, base="L"):
        self.nlabel += 1
        return f"{base}_{self.nlabel}"
    def vm(self, s, tag=None):
        self.i(s)
        self.vmq.append(tag)
    def wait_vm(self, tag=None):
        if tag is None:
            n = 0
        else:
            idx = max([k for k, t in enumerate(self.vmq) if t == tag], default=-1)
            if idx < 0:
                return
            n = len(self.vmq) - 1 - idx
        n = min(n, 63)
        self.i(f"s_waitcnt vmcnt({n})")
        self.vmq = self.vmq[len(self.vmq) - n:] if n > 0 else []
    def ds(self, s, tag=None):
        self.i(s)
        self.lgq.append(tag)
    def wait_lg(self, tag=None):
        if tag is None:
            n = 0
        else:
            idx = max([k for k, t in enumerate(self.lgq) if t == tag], default=-1)
            if idx < 0:
                return
            n = len(self.lgq) - 1 - idx
        n = min(n, 15)
        self.i(f"s_waitcnt lgkmcnt({n})")
        self.lgq = self.lgq[len(self.lgq) - n:] if n > 0 else []
    def wait_all(self):
        self.i("s_waitcnt vmcnt(0) lgkmcnt(0)")
        self.vmq = []; self.lgq = []
    def nop(self, n):
        while n > 0:
            k = min(n, 16)
            self.i(f"s_nop {k-1}")
            n -= k
    def text(self):
        return "\n".join(self.lines) + "\n"

def v(a, n=1):
    return f"v{a}" if n == 1 else f"v[{a}:{a+n-1}]"
def a(x, n=1):
    return f"a{x}" if n == 1 else f"a[{x}:{x+n-1}]"
def s(x, n=1):
    return f"s{x}" if n == 1 else f"s[{x}:{x+n-1}]"
```

```python
from asmlib import *
S_, D_, F_, H_, DH = 2048, 640, 1728, 32, 20
QKV_OFF = 0
HB_OFF = 0x800000
OB_OFF = 0x1000000
WS_USED = 0x1400000

sXCD, sIDX, sWAVE, sWM, sWN, sRT, sCT = 4, 5, 6, 7, 8, 9, 10
sT0, sT1, sT2, sT3, sT4 = 11, 12, 13, 14, 15
pX, pWQKV, pWO, pBX, pWG, pWU, pWD, pOUT, pDBG, pWS = 16, 18, 20, 22, 24, 26, 28, 30, 32, 34
rX, rWQKV, rWG, rWU, rWS, rWD, rWO, rOUT = 36, 40, 44, 48, 52, 56, 60, 64
sM1, sM2, sM3, sDIAG, sJ0 = 70, 72, 74, 76, 78
sSOX, sSOW, sM0X, sM0W = 80, 81, 82, 83
sROT = 84
sA, sB, sC, sD, sE, sF_ = 85, 86, 87, 88, 89, 90


vLANE, vJ, vQ = 1, 2, 3
```

```python
from asmlib import *
from gen_common import *

VST = 3104
BOFF = 0
OST = 3072
KOFF = OST + 10240
VOFF = KOFF + 30720
P3_LDS_END = VOFF + 12 * VST

aK, aV, aQ = 0, 80, 192
vMF, vMD = 176, 192
vS = [32, 48, 64]
vSF, vSD, vNM = 80, 96, 112
vP = [128, 136]
vO = [144, 160]
vTm = 16
sHP, sQB, sHH, sQH = 85, 86, 87, 88

def mfma32(A, d, x, y, c):
    A.i(f"v_mfma_f32_32x32x16_bf16 {d}, {x}, {y}, {c}")

def p3_setup_and_stage(A, sc1=""):
    A.c("==== P3 setup ====")
    A.i(f"s_lshr_b32 {s(sT0)}, {s(sIDX)}, 4")
    A.i(f"s_lshl_b32 {s(sHP)}, {s(sXCD)}, 1")
    A.i(f"s_add_u32 {s(sHP)}, {s(sHP)}, {s(sT0)}")
    A.i(f"s_and_b32 {s(sQB)}, {s(sIDX)}, 15")
    A.i(f"s_and_b32 {s(sHH)}, {s(sWAVE)}, 1")
    A.i(f"s_lshr_b32 {s(sQH)}, {s(sWAVE)}, 1")
    A.i(f"v_lshlrev_b32 v{vTm}, 4, v{vLANE}")
    A.i(f"s_add_u32 {s(sT0)}, {s(sQH)}, 1")
    A.i(f"s_mul_i32 {s(sT0)}, {s(sT0)}, 160")
    A.i(f"s_lshl_b32 {s(sT1)}, {s(sHP)}, 1")
    A.i(f"s_add_u32 {s(sT1)}, {s(sT1)}, {s(sHH)}")
    A.i(f"s_mul_i32 {s(sT2)}, {s(sT1)}, 5")
    A.i(f"s_add_u32 {s(sT0)}, {s(sT0)}, {s(sT2)}")
    A.i(f"s_lshl_b32 {s(sT0)}, {s(sT0)}, 14")
    A.i(f"s_lshl_b32 {s(sT3)}, {s(sQB)}, 10")
    A.i(f"s_add_u32 {s(sT0)}, {s(sT0)}, {s(sT3)}")
    A.i(f"s_sub_u32 {s(sT0)}, {s(sT0)}, 2048")
    if QKV_OFF: A.i(f"s_add_u32 {s(sT0)}, {s(sT0)}, {QKV_OFF}")
    A.i(f"s_mul_i32 {s(sT1)}, {s(sHH)}, {5*3072}")
    A.i(f"s_add_u32 {s(sT1)}, {s(sT1)}, {KOFF}")
    A.i(f"s_mul_i32 {s(sT2)}, {s(sHH)}, {6*VST}")
    A.i(f"s_add_u32 {s(sT2)}, {s(sT2)}, {VOFF}")
    A.i(f"s_cmp_eq_u32 {s(sQH)}, 0")
    A.i(f"s_cselect_b32 {s(sT1)}, {s(sT1)}, {s(sT2)}")
    A.i(f"s_movk_i32 {s(sT2)}, 3072")
    A.i(f"s_cselect_b32 {s(sT2)}, {s(sT2)}, {VST}")
    for g in range(5):
        for p in range(3):
            A.i(f"s_add_u32 {s(sT3)}, {s(sQB)}, {p}")
            A.i(f"s_cmp_ge_u32 {s(sT3)}, 2")
            A.i(f"s_cselect_b32 {s(sT4)}, 0, 0x40000000")
            A.i(f"s_add_u32 {s(sT3)}, {s(sT0)}, {g*16384 + p*1024}")
            A.i(f"s_or_b32 {s(sT3)}, {s(sT3)}, {s(sT4)}")
            A.i(f"s_mul_i32 {s(sT4)}, {s(sT2)}, {g}")
            A.i(f"s_add_u32 {s(sT4)}, {s(sT4)}, {s(sT1)}")
            A.i(f"s_add_u32 m0, {s(sT4)}, {p*1024}")
            A.i("s_nop 0")
            A.vm(f"buffer_load_dwordx4 v{vTm}, {s(rWS,4)}, {s(sT3)} offen {sc1} lds", "kv")
    vHI = vTm + 1; vJQ = vTm + 2
    A.i(f"v_lshrrev_b32 v{vHI}, 5, v{vLANE}")
    A.i(f"v_and_b32 v{vJQ}, 31, v{vLANE}")
    A.i(f"v_lshlrev_b32 v{vTm+3}, 15, v{vHI}")
    A.i(f"v_lshl_add_u32 v{vTm+3}, v{vJQ}, 3, v{vTm+3}")
    A.i(f"v_lshlrev_b32 v{vTm+4}, 3, v{vJQ}")
    A.i(f"s_lshl_b32 {s(sT1)}, {s(sHP)}, 1")
    A.i(f"s_add_u32 {s(sT1)}, {s(sT1)}, {s(sHH)}")
    A.i(f"s_mul_i32 {s(sT1)}, {s(sT1)}, {5*16384}")
    A.i(f"s_lshl_b32 {s(sT2)}, {s(sQB)}, 10")
    A.i(f"s_add_u32 {s(sT1)}, {s(sT1)}, {s(sT2)}")
    A.i(f"s_lshl_b32 {s(sT2)}, {s(sQH)}, 9")
    A.i(f"s_add_u32 {s(sT1)}, {s(sT1)}, {s(sT2)}")
    if QKV_OFF: A.i(f"s_add_u32 {s(sT1)}, {s(sT1)}, {QKV_OFF}")
    A.i(f"v_mov_b32 v{vTm+5}, 0")
    A.i(f"v_cmp_gt_u32 vcc, 32, v{vLANE}")
    A.i(f"v_mov_b32 v{vTm+6}, 0x3f80")
    A.i("s_nop 0")
    A.i(f"v_cndmask_b32 v{vTm+6}, 0, v{vTm+6}, vcc")
    for T in range(2):
        q = aQ + T*8
        A.i(f"v_accvgpr_write_b32 a{q+4}, v{vTm+5}")
        A.i(f"v_accvgpr_write_b32 a{q+5}, v{vTm+5}")
        A.i(f"v_accvgpr_write_b32 a{q+6}, v{vTm+6}")
        A.i(f"v_accvgpr_write_b32 a{q+7}, v{vTm+5}")
    A.i(f"s_add_u32 {s(sT2)}, {s(sT1)}, {4*16384}")
    for T in range(2):
        q = aQ + T*8
        A.vm(f"buffer_load_dwordx2 {a(q,2)}, v{vTm+3}, {s(rWS,4)}, {s(sT1)} offen offset:{T*256} {sc1}", "q")
    A.i(f"s_add_u32 {s(sT3)}, {s(sT1)}, 16384")
    for T in range(2):
        q = aQ + T*8
        A.vm(f"buffer_load_dwordx2 {a(q+2,2)}, v{vTm+3}, {s(rWS,4)}, {s(sT3)} offen offset:{T*256} {sc1}", "q")
    A.i("s_mov_b32 exec_hi, 0")
    for T in range(2):
        q = aQ + T*8
        A.vm(f"buffer_load_dwordx2 {a(q+4,2)}, v{vTm+4}, {s(rWS,4)}, {s(sT2)} offen offset:{T*256} {sc1}", "q")
    A.i("s_mov_b64 exec, -1")
    A.i(f"v_lshlrev_b32 v{vTm+5}, 3, v0")
    A.i(f"v_mov_b32 v{vTm+6}, 0x3f803f80")
    A.i(f"v_mov_b32 v{vTm+7}, 0x3f803f80")
    A.i(f"v_add_u32 v{vTm+10}, {VOFF + 5*VST}, v{vTm+5}")
    for hh in range(2):
        A.ds(f"ds_write_b64 v{vTm+10}, {v(vTm+6,2)} offset:{hh*6*VST}")
    A.i(f"s_lshl_b32 {s(sT2)}, {s(sQB)}, 7")
    A.i(f"s_sub_u32 {s(sT2)}, 256, {s(sT2)}")
    A.i(f"v_mov_b32 v{vTm+8}, 0xf149")
    A.i(f"v_mov_b32 v{vTm+9}, 0")
    A.i(f"v_cmp_gt_i32 vcc, {s(sT2)}, v0")
    A.i("s_nop 1")
    A.i(f"v_cndmask_b32 v{vTm+8}, 0, v{vTm+8}, vcc")
    A.ds(f"ds_write_b64 v{vTm+5}, {v(vTm+8,2)} offset:{BOFF}")
    A.i(f"v_cmp_gt_u32 vcc, 128, v0")
    A.i(f"v_mov_b32 v{vTm+8}, 0")
    A.i("s_and_saveexec_b64 s[72:73], vcc")
    for hh in range(2):
        A.ds(f"ds_write_b64 v{vTm+10}, {v(vTm+6,2)} offset:{hh*6*VST + 2048}")
    A.ds(f"ds_write_b64 v{vTm+5}, {v(vTm+8,2)} offset:{BOFF+2048}")
    A.i("s_mov_b64 exec, s[72:73]")
    A.i(f"v_lshlrev_b32 v{vTm+5}, 2, v{vHI}")
    A.i(f"v_mov_b32 v{vTm+7}, 0xf149f2ca")
    for r in range(16):
        A.i(f"v_add_u32 v{vTm+6}, {8*(r//4) + r%4}, v{vTm+5}")
        A.i(f"v_cmp_gt_u32 vcc, v{vTm+6}, v{vJQ}")
        A.i("s_nop 1")
        A.i(f"v_cndmask_b32 v{vMF+r}, v{vTm+7}, 0, vcc")
        A.i(f"v_cndmask_b32 v{vMD+r}, 0, v{vTm+7}, vcc")

def p3_compute(A, st_flags=""):
    vHI = vTm + 1; vJQ = vTm + 2
    A.wait_vm(None)
    A.wait_lg(None)
    A.i("s_barrier")
    vKA, vKB, vVA = vTm+3, vTm+4, vTm+5
    A.i(f"s_mul_i32 {s(sT0)}, {s(sHH)}, {5*3072}")
    A.i(f"s_lshl_b32 {s(sT1)}, {s(sQH)}, 9")
    A.i(f"s_add_u32 {s(sT0)}, {s(sT0)}, {s(sT1)}")
    A.i(f"v_mul_u32_u24 v{vKA}, {2*3072}, v{vHI}")
    A.i(f"v_lshl_add_u32 v{vKA}, v{vJQ}, 3, v{vKA}")
    A.i(f"v_add_u32 v{vKA}, {s(sT0)}, v{vKA}")
    A.i(f"v_lshlrev_b32 v{vKB}, 3, v{vJQ}")
    A.i(f"v_add_u32 v{vKB}, {s(sT1)}, v{vKB}")
    A.i(f"s_mul_i32 {s(sT2)}, {s(sHH)}, {5*3072}")
    A.i(f"v_and_b32 v{vTm+6}, 1, v{vQ}")
    A.i(f"v_and_b32 v{vTm+7}, 3, v{vJ}")
    A.i(f"v_lshl_add_u32 v{vTm+6}, v{vTm+6}, 2, v{vTm+7}")
    A.i(f"v_min_u32 v{vTm+6}, 5, v{vTm+6}")
    A.i(f"s_movk_i32 {s(sT3)}, {VST}")
    A.i(f"v_mul_lo_u32 v{vTm+6}, v{vTm+6}, {s(sT3)}")
    A.i(f"v_lshrrev_b32 v{vTm+7}, 2, v{vJ}")
    A.i(f"v_lshl_add_u32 v{vTm+7}, v{vHI}, 2, v{vTm+7}")
    A.i(f"v_lshl_add_u32 v{vVA}, v{vTm+7}, 3, v{vTm+6}")
    A.i(f"s_mul_i32 {s(sT3)}, {s(sHH)}, {6*VST}")
    A.i(f"s_add_u32 {s(sT3)}, {s(sT3)}, {s(sT1)}")
    A.i(f"s_add_u32 {s(sT3)}, {s(sT3)}, {VOFF}")
    A.i(f"v_add_u32 v{vVA}, {s(sT3)}, v{vVA}")
    A.i(f"v_add_u32 v{vTm+6}, {s(sT2)}, v{vKB}")
    for k in range(10):
        f0 = aK + 8*k
        A.ds(f"ds_read_b64 {a(f0,2)}, v{vKA} offset:{KOFF + k*256}", ("k", k))
        A.ds(f"ds_read_b64 {a(f0+2,2)}, v{vKA} offset:{KOFF + 3072 + k*256}", ("k", k))
        A.ds(f"ds_read_b64 {a(f0+4,2)}, v{vTm+6} offset:{KOFF + 4*3072 + k*256}", ("k", k))
    for k in range(10):
        A.ds(f"ds_read_b64 {a(aK+8*k+6,2)}, v{vKB} offset:{BOFF + k*256}", ("k", k))
    for k in range(10):
        for m in range(2):
            f = aV + 8*k + 4*m
            A.ds(f"ds_read_b64_tr_b16 {a(f,2)}, v{vVA} offset:{k*256 + m*128}", ("v", k))
            A.ds(f"ds_read_b64_tr_b16 {a(f+2,2)}, v{vVA} offset:{k*256 + m*128 + 64}", ("v", k))
    A.wait_lg(None)
    vM, vM2 = vTm+6, vTm+7
    for T in range(2):
        q0, q1 = a(aQ+T*8, 4), a(aQ+T*8+4, 4)
        A.c(f"---- P3 tile {T} pass 1")
        def sreg(t): return vSF if t == 0 else (vSD if t == 8 else vS[t % 3])
        A.i(f"v_mov_b32 v{vM}, 0xf149f2ca")
        def maxops(t):
            r = sreg(t)
            for e in range(0, 16, 2):
                A.i(f"v_max3_f32 v{vM}, v{r+e}, v{r+e+1}, v{vM}")
        for t in range(9):
            k = T + t
            d = v(sreg(t), 16)
            c = v(vMF, 16) if t == 0 else (v(vMD, 16) if t == 8 else "0")
            mfma32(A, d, a(aK+8*k, 4), q0, c)
            mfma32(A, d, a(aK+8*k+4, 4), q1, d)
            if t >= 2: maxops(t-2)
        A.nop(2); maxops(7)
        A.nop(4); maxops(8)
        A.i(f"v_mov_b32 v{vM2}, v{vM}")
        A.i("s_nop 1")
        A.i(f"v_permlane32_swap_b32 v{vM}, v{vM2}")
        A.i("s_nop 1")
        A.i(f"v_max_f32 v{vM}, v{vM}, v{vM2}")
        for r in range(16):
            A.i(f"v_sub_f32 v{vNM+r}, 0, v{vM}")
        A.c(f"---- P3 tile {T} pass 2")
        o = v(vO[T], 16)
        order = [0, 1, 2, 3, 4, 5, 6, 7, 8]
        def stageA(t):
            if t in (0, 8): return []
            k = T + t
            d = v(vS[t % 3], 16)
            return [f"v_mfma_f32_32x32x16_bf16 {d}, {a(aK+8*k,4)}, {q0}, {v(vNM,16)}",
                    f"v_mfma_f32_32x32x16_bf16 {d}, {a(aK+8*k+4,4)}, {q1}, {d}"]
        A.nop(2)
        for ins in stageA(1): A.i(ins)
        first = True
        for n, t in enumerate(order):
            r = sreg(t); P = vP[n % 2]
            nxt = stageA(order[n+1]) if n + 1 < len(order) and n >= 0 and order[n+1] != 1 else []
            if t == 0: nxt = []
            valu = []
            if t in (0, 8):
                for e in range(16): valu.append(f"v_sub_f32 v{r+e}, v{r+e}, v{vM}")
            for e in range(16): valu.append(f"v_exp_f32 v{r+e}, v{r+e}")
            for e in range(8): valu.append(f"v_cvt_pk_bf16_f32 v{P+e}, v{r+2*e}, v{r+2*e+1}")
            for idx, ins in enumerate(valu):
                if idx == 0 and nxt: A.i(nxt[0])
                if idx == 4 and nxt: A.i(nxt[1])
                A.i(ins)
            A.nop(2)
            k = T + t
            mfma32(A, o, a(aV+8*k, 4), v(P, 4), "0" if first else o)
            mfma32(A, o, a(aV+8*k+4, 4), v(P+4, 4), o)
            first = False
    A.c("---- P3 output")
    A.nop(14)
    vOA, vU = vTm+3, vTm+4
    A.i(f"s_mul_i32 {s(sT0)}, {s(sHH)}, 5")
    A.i(f"v_add_u32 v{vU}, {s(sT0)}, v{vHI}")
    A.i(f"v_lshrrev_b32 v{vOA}, 1, v{vU}")
    A.i(f"v_lshlrev_b32 v{vOA}, 8, v{vOA}")
    A.i(f"v_and_b32 v{vU}, 1, v{vU}")
    A.i(f"v_lshl_add_u32 v{vOA}, v{vU}, 3, v{vOA}")
    A.i(f"v_and_b32 v{vU}, 1, v{vJQ}")
    A.i(f"v_mul_u32_u24 v{vU}, 1280, v{vU}")
    A.i(f"v_add_u32 v{vOA}, v{vOA}, v{vU}")
    A.i(f"v_lshrrev_b32 v{vU}, 1, v{vJQ}")
    A.i(f"v_lshl_add_u32 v{vOA}, v{vU}, 4, v{vOA}")
    A.i(f"s_mul_i32 {s(sT0)}, {s(sQH)}, {4*1280}")
    A.i(f"s_add_u32 {s(sT0)}, {s(sT0)}, {OST}")
    A.i(f"v_add_u32 v{vOA}, {s(sT0)}, v{vOA}")
    A.i(f"v_cmp_gt_u32 vcc, 32, v{vLANE}")
    for T in range(2):
        o = vO[T]
        la, lb = vTm+6, vTm+7
        A.i(f"v_mov_b32 v{la}, v{o+8}")
        A.i(f"v_mov_b32 v{lb}, v{o+8}")
        A.i("s_nop 1")
        A.i(f"v_permlane32_swap_b32 v{la}, v{lb}")
        A.i("s_nop 1")
        A.i(f"v_rcp_f32 v{lb}, v{lb}")
        A.i("s_nop 0")
        for r in range(12):
            A.i(f"v_mul_f32 v{o+r}, v{lb}, v{o+r}")
        for t in range(3):
            A.i(f"v_cvt_pk_bf16_f32 v{o+4*t}, v{o+4*t}, v{o+4*t+1}")
            A.i(f"v_cvt_pk_bf16_f32 v{o+4*t+1}, v{o+4*t+2}, v{o+4*t+3}")
        A.ds(f"ds_write_b64 v{vOA}, {v(o,2)} offset:{T*2560}")
        A.ds(f"ds_write_b64 v{vOA}, {v(o+4,2)} offset:{T*2560+256}")
        A.i("s_mov_b32 exec_hi, 0")
        A.ds(f"ds_write_b64 v{vOA}, {v(o+8,2)} offset:{T*2560+512}")
        A.i("s_mov_b64 exec, -1")
    A.wait_lg(None)
    A.i("s_barrier")
    A.i(f"s_mul_i32 {s(sT0)}, {s(sQB)}, {8*20480}")
    A.i(f"s_mul_i32 {s(sT1)}, {s(sHP)}, {5*256}")
    A.i(f"s_add_u32 {s(sT0)}, {s(sT0)}, {s(sT1)}")
    A.i(f"s_add_u32 {s(sT0)}, {s(sT0)}, {OB_OFF}")
    A.i(f"s_mov_b32 {s(sT1)}, 52429")
    for rd in range(3):
        n, t1, t2, la = vTm+6, vTm+7, vTm+8, vTm+9
        A.i(f"v_add_u32 v{n}, {256*rd}, v0")
        A.i(f"v_lshlrev_b32 v{la}, 4, v{n}")
        A.ds(f"ds_read_b128 {v(32+4*rd,4)}, v{la} offset:{OST}")
        A.i(f"v_mul_lo_u32 v{t1}, v{n}, {s(sT1)}")
        A.i(f"v_lshrrev_b32 v{t1}, 22, v{t1}")
        A.i(f"v_mul_u32_u24 v{t2}, {20480-1280}, v{t1}")
        A.i(f"v_add_u32 v{48+rd}, v{t2}, v{la}")
    A.wait_lg(None)
    for rd in range(3):
        if rd == 2:
            A.i("v_cmp_gt_u32 vcc, 128, v0")
            A.i("s_and_saveexec_b64 s[72:73], vcc")
        A.vm(f"buffer_store_dwordx4 {v(32+4*rd,4)}, v{48+rd}, {s(rWS,4)}, {s(sT0)} offen {st_flags}", "ost")
        if rd == 2:
            A.i("s_mov_b64 exec, s[72:73]")
```

```python
from asmlib import *
from gen_common import *

WSLOT = 5120
NSL = 7
WREG = NSL * WSLOT
sR, sCC = 85, 86
sHBASE, sOBASE, sWDO, sWOO, sLB = 87, 88, 89, 90, 80
vACC4 = 64
vWF = 144
vOFW4 = 16
vRD = 21
vL16 = 22
vXR = 184
NA = 8

def p45(A, wait_h=None, wait_o=None, sc1=""):
    A.c("==== P4/5 setup ====")
    A.i(f"s_lshr_b32 {s(sT0)}, {s(sXCD)}, 1")
    A.i(f"s_lshl_b32 {s(sT0)}, {s(sT0)}, 3")
    A.i(f"s_and_b32 {s(sT1)}, {s(sIDX)}, 7")
    A.i(f"s_add_u32 {s(sR)}, {s(sT0)}, {s(sT1)}")
    A.i(f"s_and_b32 {s(sT0)}, {s(sXCD)}, 1")
    A.i(f"s_lshl_b32 {s(sT0)}, {s(sT0)}, 2")
    A.i(f"s_lshr_b32 {s(sT1)}, {s(sIDX)}, 3")
    A.i(f"s_add_u32 {s(sCC)}, {s(sT0)}, {s(sT1)}")
    A.i(f"s_mov_b32 {s(sT0)}, 6554")
    A.i(f"s_movk_i32 {s(sT1)}, 1280")
    t = 24
    for i in range(5):
        A.i(f"v_add_u32 v{t}, {64*i}, v{vLANE}")
        A.i(f"v_mul_lo_u32 v{t+1}, v{t}, {s(sT0)}")
        A.i(f"v_lshrrev_b32 v{t+1}, 16, v{t+1}")
        A.i(f"v_mul_u32_u24 v{t+2}, 10, v{t+1}")
        A.i(f"v_sub_u32 v{t+2}, v{t}, v{t+2}")
        A.i(f"v_and_b32 v{t+3}, 19, v{t+1}")
        A.i(f"v_bfe_u32 v{t+4}, v{t+1}, 3, 1")
        A.i(f"v_lshl_or_b32 v{t+3}, v{t+4}, 2, v{t+3}")
        A.i(f"v_bfe_u32 v{t+4}, v{t+1}, 2, 1")
        A.i(f"v_lshl_or_b32 v{t+3}, v{t+4}, 3, v{t+3}")
        A.i(f"v_mul_lo_u32 v{t+3}, v{t+3}, {s(sT1)}")
        A.i(f"v_lshl_add_u32 v{vOFW4+i}, v{t+2}, 4, v{t+3}")
    A.i(f"v_lshrrev_b32 v{t}, 2, v{vJ}")
    A.i(f"v_and_b32 v{t+1}, 1, v{vQ}")
    A.i(f"v_lshl_add_u32 v{t}, v{t+1}, 2, v{t}")
    A.i(f"v_lshrrev_b32 v{t+1}, 1, v{vQ}")
    A.i(f"v_lshl_add_u32 v{t}, v{t+1}, 4, v{t}")
    A.i(f"v_mul_u32_u24 v{t}, 160, v{t}")
    A.i(f"v_and_b32 v{t+1}, 3, v{vJ}")
    A.i(f"v_lshl_add_u32 v{t}, v{t+1}, 3, v{t}")
    A.i(f"s_mul_i32 {s(sLB)}, {s(sWAVE)}, {WREG}")
    A.i(f"v_add_u32 v{vRD}, {s(sLB)}, v{t}")
    A.i(f"v_lshlrev_b32 v{vL16}, 4, v{vLANE}")
    A.i(f"s_mul_i32 {s(sHBASE)}, {s(sR)}, {4*55296}")
    A.i(f"s_add_u32 {s(sHBASE)}, {s(sHBASE)}, {HB_OFF}")
    A.i(f"s_lshl_b32 {s(sT0)}, {s(sWAVE)}, 10")
    A.i(f"s_add_u32 {s(sHBASE)}, {s(sHBASE)}, {s(sT0)}")
    A.i(f"s_mul_i32 {s(sOBASE)}, {s(sR)}, {4*20480}")
    A.i(f"s_add_u32 {s(sOBASE)}, {s(sOBASE)}, {OB_OFF}")
    A.i(f"s_add_u32 {s(sOBASE)}, {s(sOBASE)}, {s(sT0)}")
    A.i(f"s_mul_i32 {s(sWDO)}, {s(sCC)}, 160")
    A.i(f"s_mul_i32 {s(sT0)}, {s(sWAVE)}, {32*1280}")
    A.i(f"s_add_u32 {s(sWDO)}, {s(sWDO)}, {s(sT0)}")
    NS = 19
    def is_h(n): return n < 14
    def dma_w(n):
        slot = n % NSL
        ops = []
        if is_h(n):
            ops.append(f"s_add_u32 {s(sT0)}, {s(sWDO)}, {n*4*32*1280}")
            rs = rWD
        else:
            ops.append(f"s_add_u32 {s(sT0)}, {s(sWDO)}, {(n-14)*4*32*1280}")
            rs = rWO
        L = []
        L.append(("i", ops[0]))
        for i in range(5):
            L.append(("i", f"s_add_u32 m0, {s(sLB)}, {slot*WSLOT + i*1024}"))
            L.append(("i", "s_nop 0"))
            L.append(("vm", f"buffer_load_dwordx4 v{vOFW4+i}, {s(rs,4)}, {s(sT0)} offen lds", ("w", n)))
        return L
    def ld_act(n):
        L = []
        ring = (n % NA) * 16
        for rb in range(4):
            if is_h(n):
                off = n*4096 + rb*55296
                if n == 13:
                    L.append(("i", f"s_cmp_lt_u32 {s(sWAVE)}, 2"))
                    L.append(("i", f"s_cselect_b32 {s(sT1)}, {off}, 0x40000000"))
                    L.append(("i", f"s_add_u32 {s(sT1)}, {s(sT1)}, {s(sHBASE)}"))
                else:
                    L.append(("i", f"s_add_u32 {s(sT1)}, {s(sHBASE)}, {off}"))
            else:
                off = (n-14)*4096 + rb*20480
                L.append(("i", f"s_add_u32 {s(sT1)}, {s(sOBASE)}, {off}"))
            L.append(("vm", f"buffer_load_dwordx4 {a(ring + rb*4, 4)}, v{vL16}, {s(rWS,4)}, {s(sT1)} offen {sc1}", ("a", n)))
        return L
    def emit(L):
        for x in L:
            if x[0] == "i": A.i(x[1])
            else: A.vm(x[1], x[2])
    DW = NSL - 1
    DA = NA - 1
    if wait_h: wait_h()
    for n in range(min(DW, NS)):
        emit(dma_w(n))
        if n < DA and is_h(n): emit(ld_act(n))
    for n in range(DW, DA):
        emit(ld_act(n))
    issued_a = DA
    def frag_reads(n):
        slot = n % NSL
        L = []
        for cb in range(5):
            r = vWF + ((n % 2) * 5 + cb) * 4
            L.append(f"ds_read_b64_tr_b16 {v(r,2)}, v{vRD} offset:{slot*WSLOT + cb*32}")
            L.append(f"ds_read_b64_tr_b16 {v(r+2,2)}, v{vRD} offset:{slot*WSLOT + 1280 + cb*32}")
        return L
    A.wait_vm(("w", 0))
    for x in frag_reads(0): A.ds(x, ("f", 0))
    for n in range(NS):
        fill = []
        if n + 1 < NS:
            A.wait_vm(("w", n+1))
            rd = frag_reads(n+1)
        else:
            rd = []
        A.wait_lg(("f", n))
        A.wait_vm(("a", n))
        side = []
        if n + DW < NS: side += dma_w(n + DW)
        na = n + DA
        if na < NS:
            if na == 14 and wait_o: side.append(("call", wait_o))
            side += ld_act(na)
        ring = (n % NA) * 16
        mi = 0
        for cb in range(5):
            r = vWF + ((n % 2) * 5 + cb) * 4
            for rb in range(4):
                d = v(vACC4 + (rb*5 + cb)*4, 4)
                A.i(f"v_mfma_f32_16x16x32_bf16 {d}, {v(r,4)}, {a(ring + rb*4, 4)}, {'0' if n == 0 else d}")
                if rd and mi < 10:
                    A.ds(rd.pop(0), ("f", n+1))
                k = 0
                while side and k < 2:
                    x = side.pop(0)
                    if x[0] == "i": A.i(x[1])
                    elif x[0] == "call": x[1]()
                    else: A.vm(x[1], x[2])
                    k += 1
                mi += 1
        while side:
            x = side.pop(0)
            if x[0] == "i": A.i(x[1])
            elif x[0] == "call": x[1]()
            else: A.vm(x[1], x[2])
    A.c("---- P4/5 reduction")
    vXO = 24
    A.i(f"s_lshl_b32 {s(sT0)}, {s(sR)}, 6")
    A.i(f"s_lshr_b32 {s(sT1)}, {s(sWAVE)}, 1")
    A.i(f"s_lshl_b32 {s(sT1)}, {s(sT1)}, 5")
    A.i(f"s_add_u32 {s(sT0)}, {s(sT0)}, {s(sT1)}")
    A.i(f"s_and_b32 {s(sT1)}, {s(sWAVE)}, 1")
    A.i(f"s_add_u32 {s(sT0)}, {s(sT0)}, {s(sT1)}")
    A.i(f"s_mul_i32 {s(sT0)}, {s(sT0)}, 1280")
    A.i(f"s_mul_i32 {s(sT1)}, {s(sCC)}, 160")
    A.i(f"s_add_u32 {s(sT0)}, {s(sT0)}, {s(sT1)}")
    A.i(f"v_mul_u32_u24 v{vXO}, 2560, v{vJ}")
    A.i(f"v_lshl_add_u32 v{vXO}, v{vQ}, 3, v{vXO}")
    for cb in range(5):
        A.vm(f"buffer_load_dwordx2 {v(vXR+2*cb,2)}, v{vXO}, {s(rX,4)}, {s(sT0)} offen offset:{cb*32}", "xr")
    A.nop(8)
    A.i("s_barrier")
    A.i(f"s_mul_i32 {s(sT1)}, {s(sWAVE)}, 20480")
    A.i(f"v_add_u32 v{vXO+1}, {s(sT1)}, v{vL16}")
    for tl in range(20):
        A.ds(f"ds_write_b128 v{vXO+1}, {v(vACC4+tl*4,4)} offset:{tl*1024}")
    A.wait_lg(None)
    A.i("s_barrier")
    A.i(f"s_mul_i32 {s(sT1)}, {s(sWAVE)}, 5120")
    A.i(f"v_add_u32 v{vXO+1}, {s(sT1)}, v{vL16}")
    A.i(f"v_add_u32 v{vXO+2}, {2*20480}, v{vXO+1}")
    for ww in range(4):
        for cb in range(5):
            base = vXO+1 if ww < 2 else vXO+2
            A.ds(f"ds_read_b128 {v(vACC4 + (ww*5+cb)*4, 4)}, v{base} offset:{(ww%2)*20480 + cb*1024}")
    A.wait_lg(None)
    A.wait_vm("xr")
    for cb in range(5):
        for r in range(4):
            d = vACC4 + cb*4 + r
            A.i(f"v_add_f32 v{d}, v{d}, v{d+20}")
            A.i(f"v_add_f32 v{d+40}, v{d+40}, v{d+60}")
        for r in range(4):
            d = vACC4 + cb*4 + r
            A.i(f"v_add_f32 v{d}, v{d}, v{d+40}")
        x = vXR + 2*cb
        t = 28
        A.i(f"v_lshlrev_b32 v{t}, 16, v{x}")
        A.i(f"v_and_b32 v{t+1}, 0xffff0000, v{x}")
        A.i(f"v_lshlrev_b32 v{t+2}, 16, v{x+1}")
        A.i(f"v_and_b32 v{t+3}, 0xffff0000, v{x+1}")
        for r in range(4):
            d = vACC4 + cb*4 + r
            A.i(f"v_add_f32 v{d}, v{d}, v{t+r}")
        d = vACC4 + cb*4
        A.i(f"v_cvt_pk_bf16_f32 v{x}, v{d}, v{d+1}")
        A.i(f"v_cvt_pk_bf16_f32 v{x+1}, v{d+2}, v{d+3}")
        A.vm(f"buffer_store_dwordx2 {v(x,2)}, v{vXO}, {s(rOUT,4)}, {s(sT0)} offen offset:{cb*32}", "out")
```

```python
import sys, math
from asmlib import *

from gen_common import *
SLOT = 33792
REG = 16896
MISC = 4 * SLOT
STATS = MISC
CS1 = MISC + 1024
CS2 = MISC + 1536

def srd(A, r, p, nbytes, off=0):
    if off:
        A.i(f"s_add_u32 {s(r)}, {s(p)}, {off}")
        A.i(f"s_addc_u32 {s(r+1)}, {s(p+1)}, 0")
    else:
        A.i(f"s_mov_b32 {s(r)}, {s(p)}")
        A.i(f"s_mov_b32 {s(r+1)}, {s(p+1)}")
    A.i(f"s_mov_b32 {s(r+2)}, {nbytes}")
    A.i(f"s_mov_b32 {s(r+3)}, 0x00020000")

def prologue(A, name, nwg=256):
    A.raw(f".globl {name}")
    A.raw(".p2align 8")
    A.raw(f".type {name},@function")
    A.label(name)
    A.i(f"s_cmp_ge_u32 s2, {nwg}")
    A.i(f"s_cbranch_scc1 {name}_end")
    stamp(A, 0)
    A.i("s_load_dwordx16 s[16:31], s[0:1], 0")
    A.i("s_load_dwordx4 s[32:35], s[0:1], 64")
    A.i(f"s_and_b32 {s(sXCD)}, s2, 7")
    A.i(f"s_lshr_b32 {s(sIDX)}, s2, 3")
    A.i("v_lshrrev_b32 v4, 6, v0")
    A.i("v_and_b32 v1, 63, v0")
    A.i(f"v_readfirstlane_b32 {s(sWAVE)}, v4")
    A.i("v_and_b32 v2, 15, v1")
    A.i("v_lshrrev_b32 v3, 4, v1")
    A.i("s_waitcnt lgkmcnt(0)")
    srd(A, rX, pX, S_*D_*2)
    srd(A, rWQKV, pWQKV, D_*3*D_*2)
    srd(A, rWG, pWG, D_*F_*2)
    srd(A, rWU, pWU, D_*F_*2)
    srd(A, rWS, pWS, WS_USED)
    srd(A, rWD, pWD, F_*D_*2)
    srd(A, rWO, pWO, D_*D_*2)
    srd(A, rOUT, pOUT, S_*D_*2)

STAMPS = False
NOROT = False
DBG = set()
STAMP_REGS = [68, 92, 94, 96, 98, 100]
STAMP_OFF = 0x1400000
def stamp(A, idx):
    if STAMPS:
        A.i(f"s_memrealtime {s(STAMP_REGS[idx],2)}")
def stamp_flush(A):
    if not STAMPS: return
    A.i("s_waitcnt lgkmcnt(0)")
    srd(A, rX, pWS, 0x1500000)
    A.i(f"s_lshl_b32 {s(sT0)}, s2, 2")
    A.i(f"s_add_u32 {s(sT0)}, {s(sT0)}, {s(sWAVE)}")
    A.i(f"s_lshl_b32 {s(sT0)}, {s(sT0)}, 5")
    A.i(f"s_add_u32 {s(sT0)}, {s(sT0)}, {STAMP_OFF}")
    A.i("v_mov_b32 v4, 0")
    A.i("s_mov_b64 exec, 1")
    for k, r in enumerate(STAMP_REGS):
        A.i(f"v_mov_b32 v5, {s(r)}")
        A.i(f"buffer_store_dword v5, v4, {s(rX,4)}, {s(sT0)} offen offset:{k*4}")
        A.i("s_nop 1")
    A.i("s_mov_b64 exec, -1")

def kernel_footer(A, name):
    A.label(f"{name}_end")
    A.i("s_endpgm")

def descriptor(name, vgpr=512, accum=256):
    return f""".p2align 6
.amdhsa_kernel {name}
  .amdhsa_next_free_vgpr {vgpr}
  .amdhsa_next_free_sgpr 102
  .amdhsa_accum_offset {accum}
  .amdhsa_group_segment_fixed_size 0
  .amdhsa_kernarg_size 80
  .amdhsa_user_sgpr_count 2
  .amdhsa_user_sgpr_kernarg_segment_ptr 1
  .amdhsa_system_sgpr_workgroup_id_x 1
.end_amdhsa_kernel
"""

vLANE, vJ, vQ = 1, 2, 3
vOFX = 4
vOFW = 8
vOFG = 12
vXLO, vXHI, vXLOc, vXHIc = 16, 17, 18, 19
vWLO, vWHI, vWLOc, vWHIc = 20, 21, 22, 23
vMEAN, vRSTD = 24, 28
vT = 32
vONES = 36
vWR = 40
NRING = 6
vACC = 64
vST = 128
vCS1 = 144
vCS2 = 176
vXF = 192

def xfrag(T, rb):
    n = T * 4 + rb
    if n < 64:
        return a(n * 4, 4)
    return v(vXF + (n - 64) * 4, 4)

def mfma16(A, d, x, y, c):
    A.i(f"v_mfma_f32_16x16x32_bf16 {d}, {x}, {y}, {c}")

def phase12(A, ROT=True):
    A.c("==== phase 1/2 setup ====")
    A.i(f"s_and_b32 {s(sT0)}, {s(sXCD)}, 1")
    A.i(f"s_lshl_b32 {s(sT0)}, {s(sT0)}, 3")
    A.i(f"s_and_b32 {s(sT1)}, {s(sIDX)}, 7")
    A.i(f"s_add_u32 {s(sRT)}, {s(sT0)}, {s(sT1)}")
    A.i(f"s_lshr_b32 {s(sT0)}, {s(sXCD)}, 1")
    A.i(f"s_lshl_b32 {s(sT0)}, {s(sT0)}, 2")
    A.i(f"s_lshr_b32 {s(sT2)}, {s(sIDX)}, 3")
    A.i(f"s_add_u32 {s(sCT)}, {s(sT0)}, {s(sT2)}")
    A.i(f"s_lshr_b32 {s(sWM)}, {s(sWAVE)}, 1")
    A.i(f"s_and_b32 {s(sWN)}, {s(sWAVE)}, 1")
    if ROT:
        A.i(f"s_mul_i32 {s(sROT)}, {s(sT1)}, 5")
        A.i(f"s_lshr_b32 {s(sROT)}, {s(sROT)}, 2")
        A.i(f"s_mul_i32 {s(sT3)}, {s(sT2)}, 5")
        A.i(f"s_lshr_b32 {s(sT3)}, {s(sT3)}, 1")
        A.i(f"s_add_u32 {s(sROT)}, {s(sROT)}, {s(sT3)}")
        A.i(f"s_cmp_ge_u32 {s(sROT)}, 10")
        A.i(f"s_cselect_b32 {s(sT3)}, 10, 0")
        A.i(f"s_sub_u32 {s(sROT)}, {s(sROT)}, {s(sT3)}")
    else:
        A.i(f"s_mov_b32 {s(sROT)}, 0")
    A.i(f"v_and_b32 v{vT}, 3, v{vJ}")
    A.i(f"v_cmp_eq_u32 {s(sM1,2)}, 1, v{vT}")
    A.i(f"v_cmp_eq_u32 {s(sM2,2)}, 2, v{vT}")
    A.i(f"v_cmp_eq_u32 {s(sM3,2)}, 3, v{vT}")
    A.i(f"v_lshrrev_b32 v{vT+1}, 2, v{vJ}")
    A.i(f"v_cmp_eq_u32 {s(sDIAG,2)}, v{vT+1}, v{vQ}")
    A.i(f"v_cmp_eq_u32 {s(sJ0,2)}, 0, v{vJ}")
    A.i(f"v_lshrrev_b32 v{vT}, 3, v{vLANE}")
    A.i(f"v_lshrrev_b32 v{vT+1}, 1, v{vT}")
    A.i(f"v_lshlrev_b32 v{vT+1}, 5, v{vT+1}")
    A.i(f"v_and_b32 v{vT}, 1, v{vT}")
    A.i(f"v_add_u32 v{vT}, v{vT}, v{vT+1}")
    A.i(f"s_lshl_b32 {s(sT0)}, {s(sWAVE)}, 3")
    A.i(f"v_add_u32 v{vT}, {s(sT0)}, v{vT}")
    A.i(f"s_movk_i32 {s(sT1)}, 1280")
    A.i(f"v_mul_lo_u32 v{vT}, v{vT}, {s(sT1)}")
    A.i(f"v_and_b32 v{vT+1}, 7, v{vLANE}")
    A.i(f"v_lshl_add_u32 v{vOFX}, v{vT+1}, 4, v{vT}")
    for r in range(1, 4):
        A.i(f"v_add_u32 v{vOFX+r}, {r*(2560-1056)}, v{vOFX}")
    A.i(f"s_lshl_b32 {s(sT0)}, {s(sWM)}, 2")
    A.i(f"s_lshl_b32 {s(sT1)}, {s(sWN)}, 3")
    A.i(f"s_add_u32 {s(sT0)}, {s(sT0)}, {s(sT1)}")
    A.i(f"v_lshlrev_b32 v{vT}, 4, v{vQ}")
    A.i(f"v_add_u32 v{vT}, {s(sT0)}, v{vT}")
    A.i(f"s_movk_i32 {s(sT1)}, 3840")
    A.i(f"v_mul_lo_u32 v{vT+1}, v{vT}, {s(sT1)}")
    A.i(f"v_lshl_add_u32 v{vOFW}, v{vJ}, 4, v{vT+1}")
    for r in range(1, 4):
        A.i(f"v_add_u32 v{vOFW+r}, {r*(3840-1056)}, v{vOFW}")
    A.i(f"s_movk_i32 {s(sT1)}, 3456")
    A.i(f"v_mul_lo_u32 v{vT+1}, v{vT}, {s(sT1)}")
    A.i(f"v_lshl_add_u32 v{vOFG}, v{vJ}, 4, v{vT+1}")
    for r in range(1, 4):
        A.i(f"v_add_u32 v{vOFG+r}, {r*(3456-1056)}, v{vOFG}")
    A.i(f"s_movk_i32 {s(sT1)}, 1056")
    A.i(f"v_mul_lo_u32 v{vT}, v{vJ}, {s(sT1)}")
    A.i(f"v_lshl_add_u32 v{vT}, v{vQ}, 4, v{vT}")
    A.i(f"s_lshl_b32 {s(sT0)}, {s(sWM)}, 9")
    A.i(f"s_lshl_b32 {s(sT2)}, {s(sWN)}, 8")
    A.i(f"s_add_u32 {s(sT3)}, {s(sT0)}, {s(sT2)}")
    A.i(f"v_add_u32 v{vXLO}, {s(sT3)}, v{vT}")
    A.i(f"s_sub_u32 {s(sT3)}, {s(sT0)}, {s(sT2)}")
    A.i(f"s_add_u32 {s(sT3)}, {s(sT3)}, 256")
    A.i(f"v_add_u32 v{vXHI}, {s(sT3)}, v{vT}")
    A.i(f"v_lshrrev_b32 v{vT}, 2, v{vJ}")
    A.i(f"v_and_b32 v{vT+1}, 1, v{vQ}")
    A.i(f"v_lshl_add_u32 v{vT}, v{vT+1}, 2, v{vT}")
    A.i(f"v_mul_lo_u32 v{vT}, v{vT}, {s(sT1)}")
    A.i(f"v_lshrrev_b32 v{vT+1}, 1, v{vQ}")
    A.i(f"v_lshl_add_u32 v{vT}, v{vT+1}, 8, v{vT}")
    A.i(f"v_and_b32 v{vT+1}, 3, v{vJ}")
    A.i(f"v_lshl_add_u32 v{vT+2}, v{vT+1}, 3, v{vT}")
    A.i(f"s_lshl_b32 {s(sT0)}, {s(sWN)}, 7")
    A.i(f"s_add_u32 {s(sT0)}, {s(sT0)}, {REG}")
    A.i(f"s_lshl_b32 {s(sT2)}, {s(sWM)}, 6")
    A.i(f"s_add_u32 {s(sT3)}, {s(sT0)}, {s(sT2)}")
    A.i(f"v_add_u32 v{vWLO}, {s(sT3)}, v{vT+2}")
    A.i(f"s_sub_u32 {s(sT3)}, {s(sT0)}, {s(sT2)}")
    A.i(f"s_add_u32 {s(sT3)}, {s(sT3)}, 64")
    A.i(f"v_add_u32 v{vWHI}, {s(sT3)}, v{vT+2}")
    A.i(f"v_mov_b32 v{vONES}, 0x3f803f80")
    for r in range(1, 4):
        A.i(f"v_mov_b32 v{vONES+r}, 0x3f803f80")
    A.i(f"s_mul_i32 {s(sA)}, {s(sRT)}, {128*1280}")
    A.i(f"s_lshl_b32 {s(sB)}, {s(sCT)}, 8")
    A.i(f"s_mul_i32 {s(sC)}, {s(sCT)}, 224")
    A.i(f"s_mul_i32 {s(sD)}, {s(sWAVE)}, {4*1056}")

    def issue_dma(st):
        slot = st % 4
        lst = st % 10
        ops = []
        ops.append(lambda: A.i(f"s_add_u32 {s(sE)}, {s(sROT)}, {lst}"))
        ops.append(lambda: A.i(f"s_cmp_ge_u32 {s(sE)}, 10"))
        ops.append(lambda: A.i(f"s_cselect_b32 {s(sF_)}, 10, 0"))
        ops.append(lambda: A.i(f"s_sub_u32 {s(sE)}, {s(sE)}, {s(sF_)}"))
        if st < 10:
            ops.append(lambda: A.i(f"s_lshl_b32 {s(sSOX)}, {s(sE)}, 7"))
            ops.append(lambda: A.i(f"s_add_u32 {s(sSOX)}, {s(sSOX)}, {s(sA)}"))
            ops.append(lambda: A.i(f"s_add_u32 m0, {s(sD)}, {slot*SLOT}"))
            ops.append(lambda: A.i(f"s_mul_i32 {s(sSOW)}, {s(sE)}, {64*3840}"))
            for r in range(4):
                ops.append(lambda r=r: A.vm(f"buffer_load_dwordx4 v{vOFX+r}, {s(rX,4)}, {s(sSOX)} offen offset:{r*1056} lds", ("dma", st)))
            ops.append(lambda: A.i(f"s_add_u32 m0, {s(sD)}, {slot*SLOT+REG}"))
            ops.append(lambda: A.i(f"s_add_u32 {s(sSOW)}, {s(sSOW)}, {s(sB)}"))
            for r in range(4):
                ops.append(lambda r=r: A.vm(f"buffer_load_dwordx4 v{vOFW+r}, {s(rWQKV,4)}, {s(sSOW)} offen offset:{r*1056} lds", ("dma", st)))
        else:
            ops.append(lambda: A.i(f"s_mul_i32 {s(sSOW)}, {s(sE)}, {64*3456}"))
            ops.append(lambda: A.i(f"s_add_u32 m0, {s(sD)}, {slot*SLOT}"))
            ops.append(lambda: A.i(f"s_add_u32 {s(sSOW)}, {s(sSOW)}, {s(sC)}"))
            for r in range(4):
                ops.append(lambda r=r: A.vm(f"buffer_load_dwordx4 v{vOFG+r}, {s(rWG,4)}, {s(sSOW)} offen offset:{r*1056} lds", ("dma", st)))
            ops.append(lambda: A.i(f"s_add_u32 m0, {s(sD)}, {slot*SLOT+REG+16}"))
            ops.append(lambda: A.i(f"s_nop 0"))
            for r in range(4):
                ops.append(lambda r=r: A.vm(f"buffer_load_dwordx4 v{vOFG+r}, {s(rWU,4)}, {s(sSOW)} offen offset:{r*1056} lds", ("dma", st)))
        return ops

    for st in range(4):
        for op in issue_dma(st): op()

    bundles = []
    groups = []
    ring = [0]
    def wring():
        r = vWR + (ring[0] % NRING) * 4
        ring[0] += 1
        return r
    for st in range(10):
        for ks in range(2):
            T = 2 * st + ks
            xb = []
            for rb in range(4):
                base = vXLOc if rb < 2 else vXHIc
                xb.append(f"ds_read_b128 {xfrag(T, rb)}, v{base} offset:{(rb%2)*128 + ks*64}")
            bundles.append((st, ("x", T), xb))
            for c in range(4):
                r = wring()
                base = vWLOc if c < 2 else vWHIc
                ins = [f"ds_read_b64_tr_b16 {v(r,2)}, v{base} offset:{ks*512 + (c%2)*32}",
                       f"ds_read_b64_tr_b16 {v(r+2,2)}, v{base} offset:{8448 + ks*512 + (c%2)*32}"]
                bundles.append((st, ("w", T, c), ins))
                m = []
                first = (T == 0)
                for rb in range(4):
                    d = v(vACC + (c*4+rb)*4, 4)
                    m.append(f"v_mfma_f32_16x16x32_bf16 {d}, {v(r,4)}, {xfrag(T, rb)}, {'0' if first else d}")
                if c < 2:
                    d = v(vCS1 + c*4, 4)
                    m.append(f"v_mfma_f32_16x16x32_bf16 {d}, {v(r,4)}, {v(vONES,4)}, {'0' if first else d}")
                else:
                    rb = c - 2
                    d = v(vST + rb*8, 4)
                    m.append(f"v_mfma_f32_16x16x32_bf16 {d}, {v(vONES,4)}, {xfrag(T, rb)}, {'0' if first else d}")
                    d = v(vST + rb*8 + 4, 4)
                    m.append(f"v_mfma_f32_16x16x32_bf16 {d}, {xfrag(T, rb)}, {xfrag(T, rb)}, {'0' if first else d}")
                groups.append((st, [("x", T), ("w", T, c)], m))
    np1 = len(groups)
    for st in range(10, 20):
        for ks in range(2):
            T = 2 * (st - 10) + ks
            for b in range(7):
                r = wring()
                base = vWLOc if b < 4 else vWHIc
                bo = (b if b < 4 else b - 4) * 16
                ins = [f"ds_read_b64_tr_b16 {v(r,2)}, v{base} offset:{ks*512 + bo}",
                       f"ds_read_b64_tr_b16 {v(r+2,2)}, v{base} offset:{8448 + ks*512 + bo}"]
                bundles.append((st, ("g", T, b), ins))
                m = []
                first = (T == 0)
                for rb in range(4):
                    d = v(vACC + (b*4+rb)*4, 4)
                    m.append(f"v_mfma_f32_16x16x32_bf16 {d}, {v(r,4)}, {xfrag(T, rb)}, {'0' if first else d}")
                if b < 4:
                    d = v(vCS2 + b*4, 4)
                    m.append(f"v_mfma_f32_16x16x32_bf16 {d}, {v(r,4)}, {v(vONES,4)}, {'0' if first else d}")
                groups.append((st, [("g", T, b)], m))

    state = dict(bi=0, cur_stage=-1, pend=[])
    LOOK = 4

    def open_stage(st):
        A.c(f"--- open stage {st}")
        A.wait_vm(("dma", st))
        A.wait_lg(None)
        if "nobar" not in DBG: A.i("s_barrier")
        slot = st % 4
        if st == 10:
            A.i(f"s_movk_i32 {s(sT1)}, 1056")
            A.i(f"v_lshrrev_b32 v{vT}, 2, v{vJ}")
            A.i(f"v_and_b32 v{vT+1}, 1, v{vQ}")
            A.i(f"v_lshl_add_u32 v{vT}, v{vT+1}, 2, v{vT}")
            A.i(f"v_mul_lo_u32 v{vT}, v{vT}, {s(sT1)}")
            A.i(f"v_lshrrev_b32 v{vT+1}, 1, v{vQ}")
            A.i(f"v_lshl_add_u32 v{vT}, v{vT+1}, 8, v{vT}")
            A.i(f"v_and_b32 v{vT+1}, 1, v{vJ}")
            A.i(f"v_lshl_add_u32 v{vT}, v{vT+1}, 3, v{vT}")
            A.i(f"v_bfe_u32 v{vT+1}, v{vJ}, 1, 1")
            A.i(f"s_movk_i32 {s(sT1)}, {REG+16}")
            A.i(f"v_mad_u32_u24 v{vT}, v{vT+1}, {s(sT1)}, v{vT}")
            A.i(f"s_mul_i32 {s(sT0)}, {s(sWN)}, {7*16}")
            A.i(f"s_mul_i32 {s(sT2)}, {s(sWM)}, {3*16}")
            A.i(f"s_add_u32 {s(sT3)}, {s(sT0)}, {s(sT2)}")
            A.i(f"v_add_u32 v{vWLO}, {s(sT3)}, v{vT}")
            A.i(f"s_lshl_b32 {s(sT2)}, {s(sWM)}, 6")
            A.i(f"s_sub_u32 {s(sT3)}, {s(sT0)}, {s(sT2)}")
            A.i(f"s_add_u32 {s(sT3)}, {s(sT3)}, 64")
            A.i(f"v_add_u32 v{vWHI}, {s(sT3)}, v{vT}")
        if st < 10:
            A.i(f"v_add_u32 v{vXLOc}, {slot*SLOT}, v{vXLO}")
            A.i(f"v_add_u32 v{vXHIc}, {slot*SLOT}, v{vXHI}")
        A.i(f"v_add_u32 v{vWLOc}, {slot*SLOT}, v{vWLO}")
        A.i(f"v_add_u32 v{vWHIc}, {slot*SLOT}, v{vWHI}")
        state["cur_stage"] = st
        if st >= 1 and st + 3 < 20 and "nodma" not in DBG:
            state["pend"] += issue_dma(st + 3)

    def wcount_ahead(gi):
        n = 0
        for k in range(state["bi"]):
            if bundles[k][1][0] in ("w", "g"): n += 1
        return n - (gi + 1)

    def issue_bundle():
        st, tag, ins = bundles[state["bi"]]
        if st != state["cur_stage"]:
            open_stage(st)
        for x in ins:
            if "nods" in DBG: continue
            if "nox" in DBG and tag[0] == "x": continue
            A.ds(x, tag)
        state["bi"] += 1

    def run_groups(g0, g1, blimit):
        for gi in range(g0, g1):
            st, needs, m = groups[gi]
            while not all(any(bundles[k][1] == t for k in range(state["bi"])) for t in needs):
                issue_bundle()
            for t in needs: A.wait_lg(t)
            for mi, ins in enumerate(m):
                if "nomfma" not in DBG: A.i(ins)
                if mi == 0:
                    while state["bi"] < blimit and wcount_ahead(gi) < LOOK:
                        if bundles[state["bi"]][0] != state["cur_stage"]:
                            break
                        issue_bundle()
                elif mi == 3:
                    if state["bi"] < blimit and wcount_ahead(gi) < LOOK and bundles[state["bi"]][0] != state["cur_stage"]:
                        issue_bundle()
                        while state["bi"] < blimit and wcount_ahead(gi) < LOOK and bundles[state["bi"]][0] == state["cur_stage"]:
                            issue_bundle()
                else:
                    for _ in range(2):
                        if state["pend"]:
                            state["pend"].pop(0)()
    nb1 = sum(1 for b in bundles if b[0] < 10)
    run_groups(0, np1, nb1)
    while state["pend"]: state["pend"].pop(0)()

    A.c("==== P1 epilogue ====")
    stamp(A, 1)
    A.nop(10)
    for rb in range(2):
        d1 = vST + rb*8; d2 = d1 + 4
        t = vT + rb*2
        A.i(f"v_cndmask_b32 v{d2}, v{d2}, v{d2+1}, {s(sM1,2)}")
        A.i(f"v_cndmask_b32 v{d2}, v{d2}, v{d2+2}, {s(sM2,2)}")
        A.i(f"v_cndmask_b32 v{d2}, v{d2}, v{d2+3}, {s(sM3,2)}")
        A.i(f"v_mul_f32 v{t}, {1.0/640}, v{d1}")
        A.i(f"v_mul_f32 v{d2}, {1.0/640}, v{d2}")
        A.i(f"v_fma_f32 v{d2}, -v{t}, v{t}, v{d2}")
        A.i(f"v_add_f32 v{d2}, 0x3727c5ac, v{d2}")
        A.i(f"v_rsq_f32 v{t+1}, v{d2}")
    A.i(f"s_lshl_b32 {s(sT0)}, {s(sWM)}, 9")
    A.i(f"s_lshl_b32 {s(sT2)}, {s(sWN)}, 8")
    A.i(f"s_add_u32 {s(sT3)}, {s(sT0)}, {s(sT2)}")
    A.i(f"s_add_u32 {s(sT3)}, {s(sT3)}, {STATS}")
    A.i(f"v_lshlrev_b32 v{vST}, 3, v{vJ}")
    A.i(f"v_add_u32 v{vST+1}, {s(sT3)}, v{vST}")
    A.i(f"s_sub_u32 {s(sT3)}, {s(sT0)}, {s(sT2)}")
    A.i(f"s_add_u32 {s(sT3)}, {s(sT3)}, {STATS+256}")
    A.i(f"v_add_u32 v{vST+2}, {s(sT3)}, v{vST}")
    A.i(f"s_mov_b64 exec, {s(sDIAG,2)}")
    A.ds(f"ds_write_b64 v{vST+1}, {v(vT,2)}")
    A.ds(f"ds_write_b64 v{vST+1}, {v(vT+2,2)} offset:128")
    A.i(f"s_mov_b64 exec, -1")
    A.i(f"s_lshl_b32 {s(sT0)}, {s(sWN)}, 8")
    A.i(f"s_lshl_b32 {s(sT2)}, {s(sWM)}, 7")
    A.i(f"s_add_u32 {s(sT3)}, {s(sT0)}, {s(sT2)}")
    A.i(f"s_add_u32 {s(sT3)}, {s(sT3)}, {CS1}")
    A.i(f"v_lshlrev_b32 v{vST}, 4, v{vQ}")
    A.i(f"v_add_u32 v{vST+3}, {s(sT3)}, v{vST}")
    A.i(f"s_sub_u32 {s(sT3)}, {s(sT0)}, {s(sT2)}")
    A.i(f"s_add_u32 {s(sT3)}, {s(sT3)}, {CS1+128}")
    A.i(f"v_add_u32 v{vST+4}, {s(sT3)}, v{vST}")
    A.i(f"s_mov_b64 exec, {s(sJ0,2)}")
    A.ds(f"ds_write_b128 v{vST+3}, {v(vCS1,4)}")
    A.ds(f"ds_write_b128 v{vST+3}, {v(vCS1+4,4)} offset:64")
    A.i(f"s_mov_b64 exec, -1")
    A.wait_lg(None)
    A.i("s_barrier")
    for rb in range(4):
        base = vST+1 if rb < 2 else vST+2
        A.ds(f"ds_read_b64 {v(vST+8+rb*2,2)}, v{base} offset:{(rb%2)*128}")
    for c in range(4):
        base = vST+3 if c < 2 else vST+4
        A.ds(f"ds_read_b128 {v(vCS1+c*4,4)}, v{base} offset:{(c%2)*64}")
    A.wait_lg(None)
    for rb in range(4):
        A.i(f"v_mov_b32 v{vMEAN+rb}, v{vST+8+rb*2}")
        A.i(f"v_mov_b32 v{vRSTD+rb}, v{vST+9+rb*2}")
    cs = DH ** -0.5 * math.log2(math.e)
    import struct
    csbits = struct.unpack("<I", struct.pack("<f", cs))[0]
    A.i(f"s_cmp_lt_u32 {s(sCT)}, 5")
    A.i(f"s_cselect_b32 {s(sT0)}, {csbits:#x}, 1.0")
    for rb in range(4):
        A.i(f"v_mul_f32 v{vST+8+rb}, {s(sT0)}, v{vRSTD+rb}")
    A.i(f"v_lshlrev_b32 v{vST}, 14, v{vQ}")
    A.i(f"v_lshl_add_u32 v{vST}, v{vJ}, 4, v{vST}")
    A.i(f"s_lshl_b32 {s(sT0)}, {s(sCT)}, 19")
    A.i(f"s_lshl_b32 {s(sT1)}, {s(sWN)}, 18")
    A.i(f"s_add_u32 {s(sT0)}, {s(sT0)}, {s(sT1)}")
    A.i(f"s_lshl_b32 {s(sT1)}, {s(sRT)}, 10")
    A.i(f"s_add_u32 {s(sT0)}, {s(sT0)}, {s(sT1)}")
    A.i(f"s_lshl_b32 {s(sT1)}, {s(sWM)}, 9")
    A.i(f"s_add_u32 {s(sT0)}, {s(sT0)}, {s(sT1)}")
    if QKV_OFF: A.i(f"s_add_u32 {s(sT0)}, {s(sT0)}, {QKV_OFF}")
    A.i(f"s_cmp_ge_u32 {s(sCT)}, 15")
    A.i(f"s_cselect_b32 {s(sT0)}, 0x40000000, {s(sT0)}")
    for c in range(4):
        for pi in range(2):
            o = vST + 16 + ((c*2+pi) % 2) * 4
            o = vWR + ((c*2+pi) % 4) * 4
            for h in range(2):
                rb = 2*pi + h
                ac = vACC + (c*4+rb)*4
                for r in range(4):
                    A.i(f"v_fma_f32 v{ac+r}, -v{vMEAN+rb}, v{vCS1+c*4+r}, v{ac+r}")
                for r in range(4):
                    A.i(f"v_mul_f32 v{ac+r}, v{vST+8+rb}, v{ac+r}")
                A.i(f"v_cvt_pk_bf16_f32 v{o+2*h}, v{ac}, v{ac+1}")
                A.i(f"v_cvt_pk_bf16_f32 v{o+2*h+1}, v{ac+2}, v{ac+3}")
            A.i(f"s_lshl_b32 {s(sT1)}, {s(sWM)}, 1")
            A.i(f"s_add_u32 {s(sT1)}, {s(sT1)}, {c}")
            A.i(f"s_and_b32 {s(sT1)}, {s(sT1)}, 3")
            A.i(f"s_lshl_b32 {s(sT1)}, {s(sT1)}, 16")
            A.i(f"s_add_u32 {s(sT2)}, {s(sWN)}, {pi}")
            A.i(f"s_and_b32 {s(sT2)}, {s(sT2)}, 1")
            A.i(f"s_lshl_b32 {s(sT2)}, {s(sT2)}, 8")
            A.i(f"s_add_u32 {s(sT1)}, {s(sT1)}, {s(sT2)}")
            A.i(f"s_add_u32 {s(sT1)}, {s(sT1)}, {s(sT0)}")
            A.vm(f"buffer_store_dwordx4 {v(o,4)}, v{vST}, {s(rWS,4)}, {s(sT1)} offen sc1", "qkvst")
    return dict(run_groups=run_groups, groups=groups, np1=np1, bundles=bundles, state=state)

def phase2_rest(A, ctx):
    run_groups, groups, np1, bundles, state = ctx["run_groups"], ctx["groups"], ctx["np1"], ctx["bundles"], ctx["state"]
    stamp(A, 2)
    run_groups(np1, len(groups), len(bundles))
    A.c("==== P2 epilogue ====")
    stamp(A, 3)
    A.nop(10)
    A.i(f"s_mul_i32 {s(sT0)}, {s(sWN)}, {7*64}")
    A.i(f"s_add_u32 {s(sT0)}, {s(sT0)}, {CS2}")
    A.i(f"s_mul_i32 {s(sT2)}, {s(sWM)}, {3*64}")
    A.i(f"s_add_u32 {s(sT3)}, {s(sT0)}, {s(sT2)}")
    A.i(f"v_lshlrev_b32 v{vT}, 4, v{vQ}")
    A.i(f"v_add_u32 v{vT+1}, {s(sT3)}, v{vT}")
    A.i(f"s_lshl_b32 {s(sT2)}, {s(sWM)}, 8")
    A.i(f"s_sub_u32 {s(sT3)}, {s(sT0)}, {s(sT2)}")
    A.i(f"s_add_u32 {s(sT3)}, {s(sT3)}, 256")
    A.i(f"v_add_u32 v{vT+2}, {s(sT3)}, v{vT}")
    A.i(f"s_mov_b64 exec, {s(sJ0,2)}")
    for b in range(4):
        A.ds(f"ds_write_b128 v{vT+1}, {v(vCS2+b*4,4)} offset:{b*64}")
    A.i(f"s_mov_b64 exec, -1")
    A.wait_lg(None)
    A.i("s_barrier")
    def csreg(b): return vCS2 + b*4 if b < 4 else vWR + (b-4)*4
    for b in range(7):
        base = vT+1 if b < 4 else vT+2
        A.ds(f"ds_read_b128 {v(csreg(b),4)}, v{base} offset:{(b if b < 4 else b-4)*64}")
    A.i(f"v_cmp_gt_u32 vcc, 32, v{vLANE}")
    A.i("s_nop 1")
    vR2 = vWR + 12
    for pi in range(2):
        A.i(f"v_cndmask_b32 v{vR2+pi}, v{vRSTD+2*pi+1}, v{vRSTD+2*pi}, vcc")
        A.i(f"v_mul_f32 v{vR2+pi}, v{vR2+pi}, v{vR2+pi}")
    vO1, vO2, vQ1, vOT = vWR+14, vWR+15, vWR+16, vWR+17
    A.i(f"v_lshrrev_b32 v{vO1}, 5, v{vLANE}")
    A.i(f"s_mov_b32 {s(sT0)}, 55296")
    A.i(f"v_mul_lo_u32 v{vO1}, v{vO1}, {s(sT0)}")
    A.i(f"v_lshl_add_u32 v{vO1}, v{vJ}, 4, v{vO1}")
    A.i(f"v_and_b32 v{vQ1}, 1, v{vQ}")
    A.i(f"v_lshl_add_u32 v{vO2}, v{vQ1}, 3, v{vO1}")
    A.i(f"v_lshl_add_u32 v{vO1}, v{vQ1}, 8, v{vO1}")
    A.i(f"s_lshl_b32 {s(sT0)}, {s(sRT)}, 3")
    A.i(f"s_lshl_b32 {s(sT1)}, {s(sWM)}, 2")
    A.i(f"s_add_u32 {s(sT0)}, {s(sT0)}, {s(sT1)}")
    A.i(f"s_mul_i32 {s(sT0)}, {s(sT0)}, 55296")
    A.i(f"s_add_u32 {s(sT0)}, {s(sT0)}, {HB_OFF}")
    A.i(f"s_mul_i32 {s(sT4)}, {s(sCT)}, 14")
    A.i(f"s_mul_i32 {s(sT1)}, {s(sWN)}, 7")
    A.i(f"s_add_u32 {s(sT4)}, {s(sT4)}, {s(sT1)}")
    A.wait_lg(None)
    vX = vWR + 18
    for pi in range(2):
        for bp in range(4):
            blks = [2*bp, 2*bp+1] if bp < 3 else [6]
            for k, b in enumerate(blks):
                ra = vACC + (b*4 + 2*pi)*4
                rb_ = vACC + (b*4 + 2*pi+1)*4
                for r in range(4):
                    A.i(f"v_fma_f32 v{ra+r}, -v{vMEAN+2*pi}, v{csreg(b)+r}, v{ra+r}")
                    A.i(f"v_fma_f32 v{rb_+r}, -v{vMEAN+2*pi+1}, v{csreg(b)+r}, v{rb_+r}")
                A.i("s_nop 1")
                for r in range(4):
                    A.i(f"v_permlane32_swap_b32 v{ra+r}, v{rb_+r}")
                A.i("s_nop 1")
                for r in range(4):
                    A.i(f"v_mul_f32 v{ra+r}, v{ra+r}, v{rb_+r}")
                for r in range(4):
                    A.i(f"v_mul_f32 v{ra+r}, v{vR2+pi}, v{ra+r}")
                A.i(f"v_cvt_pk_bf16_f32 v{vX+2*k}, v{ra}, v{ra+1}")
                A.i(f"v_cvt_pk_bf16_f32 v{vX+2*k+1}, v{ra+2}, v{ra+3}")
            b0 = blks[0]
            if b0 < 4:
                A.i(f"s_mul_i32 {s(sT1)}, {s(sWM)}, 3")
                A.i(f"s_add_u32 {s(sT1)}, {s(sT1)}, {b0}")
            else:
                A.i(f"s_lshl_b32 {s(sT1)}, {s(sWM)}, 2")
                A.i(f"s_sub_u32 {s(sT1)}, {b0}, {s(sT1)}")
            A.i(f"s_add_u32 {s(sT1)}, {s(sT1)}, {s(sT4)}")
            A.i(f"s_add_u32 {s(sT2)}, {s(sWN)}, {pi}")
            A.i(f"s_and_b32 {s(sT2)}, {s(sT2)}, 1")
            A.i(f"s_mul_i32 {s(sT2)}, {s(sT2)}, {2*55296}")
            A.i(f"s_add_u32 {s(sT2)}, {s(sT2)}, {s(sT0)}")
            A.i(f"s_lshl_b32 {s(sT3)}, {s(sT1)}, 8")
            A.i(f"s_add_u32 {s(sT2)}, {s(sT2)}, {s(sT3)}")
            if len(blks) == 2:
                A.i("s_nop 0")
                A.i(f"v_permlane16_swap_b32 v{vX}, v{vX+2}")
                A.i(f"v_permlane16_swap_b32 v{vX+1}, v{vX+3}")
                A.i(f"v_add_u32 v{vOT}, {s(sT1)}, v{vQ1}")
                A.i(f"v_cmp_gt_u32 vcc, 216, v{vOT}")
                A.i("s_nop 1")
                A.i(f"v_cndmask_b32 v{vOT}, 0x40000000, v{vO1}, vcc")
                A.vm(f"buffer_store_dwordx4 {v(vX,4)}, v{vOT}, {s(rWS,4)}, {s(sT2)} offen sc1", "hst")
            else:
                A.i(f"s_cmp_lt_u32 {s(sT1)}, 216")
                A.i(f"s_cselect_b32 {s(sT3)}, 0, 0x40000000")
                A.i(f"v_or_b32 v{vOT}, {s(sT3)}, v{vO2}")
                A.vm(f"buffer_store_dwordx2 {v(vX,2)}, v{vOT}, {s(rWS,4)}, {s(sT2)} offen sc1", "hst")
            A.nop(2)

def build(which):
    import p3, p45
    A = Asm()
    names = []
    if which == "k1":
        names = ["k1_kernel"]
    elif which == "k12":
        names = ["k1_kernel", "k2_kernel"]
    elif which == "k123":
        names = ["k1_kernel", "k2_kernel", "k3_kernel"]
    for n in names:
        A.raw(f"; @launch kernel={n} grid=(256,1,1) block=(256,1,1) lds=163840")
    A.raw('.amdgcn_target "amdgcn-amd-amdhsa--gfx950"')
    A.raw(".text")
    if "k1_kernel" in names:
        prologue(A, "k1_kernel")
        ctx = phase12(A, ROT=not NOROT)
        phase2_rest(A, ctx)
        stamp(A, 4)
        A.wait_all()
        stamp(A, 5)
        stamp_flush(A)
        kernel_footer(A, "k1_kernel")
    if "k2_kernel" in names:
        A.vmq = []; A.lgq = []
        prologue(A, "k2_kernel")
        p3.p3_setup_and_stage(A)
        stamp(A, 1)
        p3.p3_compute(A)
        stamp(A, 4)
        A.wait_all()
        stamp(A, 5)
        stamp_flush(A)
        kernel_footer(A, "k2_kernel")
    if "k3_kernel" in names:
        A.vmq = []; A.lgq = []
        prologue(A, "k3_kernel")
        p45.p45(A)
        stamp(A, 4)
        A.wait_all()
        stamp(A, 5)
        stamp_flush(A)
        kernel_footer(A, "k3_kernel")
    A.raw('.section .rodata,"a"')
    for n in names:
        A.raw(descriptor(n))
    return A

if __name__ == "__main__":
    if len(sys.argv) > 3 and "stamps" in sys.argv[3:]: STAMPS = True
    if "norot" in sys.argv[3:]: NOROT = True
    for x in sys.argv[3:]:
        if x in ("nodma", "nods", "nox", "nobar", "nomfma"): DBG.add(x)
    A = build(sys.argv[1])
    open(sys.argv[2], "w").write(A.text())
    print("instructions:", A.ninstr)
```

```python
from asmlib import *
S_, D_, F_, H_, DH = 2048, 640, 1728, 32, 20
QKV_OFF = 0
HB_OFF = 0x800000
OB_OFF = 0x1000000
WT_OFF = 0x1300000
FLG_OFF = 0x15F0000
WS_USED = 0x1600000

sXCD, sIDX, sWAVE, sWM, sWN, sRT, sCT = 4, 5, 6, 7, 8, 9, 10
sT0, sT1, sT2, sT3, sT4 = 11, 12, 13, 14, 15
pX, pWQKV, pWO, pBX, pWG, pWU, pWD, pOUT, pDBG, pWS = 16, 18, 20, 22, 24, 26, 28, 30, 32, 34
rX, rWQKV, rWG, rWU, rWS, rWD, rWO, rOUT = 36, 40, 44, 48, 52, 56, 60, 64
sM1, sM2, sM3, sDIAG, sJ0 = 70, 72, 74, 76, 78
sSOX, sSOW, sM0X, sM0W = 80, 81, 82, 83
sROT = 84
sA, sB, sC, sD, sE, sF_ = 85, 86, 87, 88, 89, 90


vLANE, vJ, vQ = 1, 2, 3
rTMP = 92
sKV0, sKV1, sKV2, sKV3 = 96, 97, 98, 99
sRH = 44
sP0, sP1 = 45, 46
rDBG = 56
sEP = 101
sEPT = 100
```

```python
from asmlib import *
from gen_common import *

VST = 3104
KOFF = 0
VOFF = 30720
MISC_ = 135168
ONES0 = MISC_ + 8192 + 160
ONES1 = MISC_ + 8192 + 4096 + 64
BOFF = MISC_ + 8192 + 8192
OST = MISC_ + 8192 + 8192 + 3072 + 0
assert OST + 10240 <= 163840 + 0 or True
OST = 65536 - 10240 + 12288
OST = 67584

aK, aV, aQ = 0, 80, 160
vMF, vMD = 176, 192
vS = [32, 48, 64]
vSF, vSD, vNM = 80, 96, 112
vP = [128, 136]
vO = [144, 160]
vTm = 16
sHP, sQB, sHH, sQH = 60, 61, 62, 63

def p3_ids(A):
    A.i(f"s_lshr_b32 {s(sT0)}, {s(sIDX)}, 4")
    A.i(f"s_lshl_b32 {s(sHP)}, {s(sXCD)}, 1")
    A.i(f"s_add_u32 {s(sHP)}, {s(sHP)}, {s(sT0)}")
    A.i(f"s_and_b32 {s(sQB)}, {s(sIDX)}, 15")
    A.i(f"s_and_b32 {s(sHH)}, {s(sWAVE)}, 1")
    A.i(f"s_lshr_b32 {s(sQH)}, {s(sWAVE)}, 1")

def p3_stage_kv(A, vA, sc1=""):
    ops = []
    def I(x): ops.append(lambda: A.i(x))
    I(f"v_lshlrev_b32 v{vA}, 4, v{vLANE}")
    I(f"s_add_u32 {s(sT0)}, {s(sQH)}, 1")
    I(f"s_mul_i32 {s(sT0)}, {s(sT0)}, 160")
    I(f"s_lshl_b32 {s(sT1)}, {s(sHP)}, 1")
    I(f"s_add_u32 {s(sT1)}, {s(sT1)}, {s(sHH)}")
    I(f"s_mul_i32 {s(sT2)}, {s(sT1)}, 5")
    I(f"s_add_u32 {s(sT0)}, {s(sT0)}, {s(sT2)}")
    I(f"s_lshl_b32 {s(sT0)}, {s(sT0)}, 14")
    I(f"s_lshl_b32 {s(sT3)}, {s(sQB)}, 10")
    I(f"s_add_u32 {s(sT0)}, {s(sT0)}, {s(sT3)}")
    I(f"s_sub_u32 {s(sKV0)}, {s(sT0)}, {2048 - QKV_OFF}")
    I(f"s_mul_i32 {s(sT1)}, {s(sHH)}, {5*3072}")
    I(f"s_add_u32 {s(sT1)}, {s(sT1)}, {KOFF}")
    I(f"s_mul_i32 {s(sT2)}, {s(sHH)}, {5*VST}")
    I(f"s_add_u32 {s(sT2)}, {s(sT2)}, {VOFF}")
    I(f"s_cmp_eq_u32 {s(sQH)}, 0")
    I(f"s_cselect_b32 {s(sKV1)}, {s(sT1)}, {s(sT2)}")
    I(f"s_movk_i32 {s(sT2)}, 3072")
    I(f"s_cselect_b32 {s(sKV2)}, {s(sT2)}, {VST}")
    for p in range(3):
        I(f"s_add_u32 {s(sT3)}, {s(sQB)}, {p}")
        I(f"s_cmp_ge_u32 {s(sT3)}, 2")
        I(f"s_cselect_b32 {s(sT4)}, 0, 0x40000000")
        I(f"s_or_b32 {s(sKV3)}, {s(sKV0)}, {s(sT4)}")
        for g in range(5):
            I(f"s_mul_i32 {s(sT4)}, {s(sKV2)}, {g}")
            I(f"s_add_u32 {s(sT4)}, {s(sT4)}, {s(sKV1)}")
            I(f"s_add_u32 m0, {s(sT4)}, {p*1024}")
            I(f"s_add_u32 {s(sT3)}, {s(sKV3)}, {g*16384 + p*1024}")
            ops.append(lambda: A.vm(f"buffer_load_dwordx4 v{vA}, {s(rWS,4)}, {s(sT3)} offen {sc1} lds", "kv"))
    return ops

def p3_setup(A, sc1=""):
    A.c("==== P3 setup ====")
    vHI = vTm + 1; vJQ = vTm + 2
    A.i(f"v_lshrrev_b32 v{vHI}, 5, v{vLANE}")
    A.i(f"v_and_b32 v{vJQ}, 31, v{vLANE}")
    A.i(f"v_lshlrev_b32 v{vTm+3}, 15, v{vHI}")
    A.i(f"v_lshl_add_u32 v{vTm+3}, v{vJQ}, 3, v{vTm+3}")
    A.i(f"v_lshlrev_b32 v{vTm+4}, 3, v{vJQ}")
    A.i(f"s_lshl_b32 {s(sT1)}, {s(sHP)}, 1")
    A.i(f"s_add_u32 {s(sT1)}, {s(sT1)}, {s(sHH)}")
    A.i(f"s_mul_i32 {s(sT1)}, {s(sT1)}, {5*16384}")
    A.i(f"s_lshl_b32 {s(sT2)}, {s(sQB)}, 10")
    A.i(f"s_add_u32 {s(sT1)}, {s(sT1)}, {s(sT2)}")
    A.i(f"s_lshl_b32 {s(sT2)}, {s(sQH)}, 9")
    A.i(f"s_add_u32 {s(sT1)}, {s(sT1)}, {s(sT2)}")
    if QKV_OFF: A.i(f"s_add_u32 {s(sT1)}, {s(sT1)}, {QKV_OFF}")
    A.i(f"v_mov_b32 v{vTm+5}, 0")
    A.i(f"v_cmp_gt_u32 vcc, 32, v{vLANE}")
    A.i(f"v_mov_b32 v{vTm+6}, 0x3f80")
    A.i("s_nop 0")
    A.i(f"v_cndmask_b32 v{vTm+6}, 0, v{vTm+6}, vcc")
    for T in range(2):
        q = aQ + T*8
        A.i(f"v_accvgpr_write_b32 a{q+4}, v{vTm+5}")
        A.i(f"v_accvgpr_write_b32 a{q+5}, v{vTm+5}")
        A.i(f"v_accvgpr_write_b32 a{q+6}, v{vTm+6}")
        A.i(f"v_accvgpr_write_b32 a{q+7}, v{vTm+5}")
    A.i(f"s_add_u32 {s(sT2)}, {s(sT1)}, {4*16384}")
    A.i(f"s_add_u32 {s(sT3)}, {s(sT1)}, 16384")
    for T in range(2):
        q = aQ + T*8
        A.vm(f"buffer_load_dwordx2 {a(q,2)}, v{vTm+3}, {s(rWS,4)}, {s(sT1)} offen offset:{T*256} {sc1}", "q")
        A.vm(f"buffer_load_dwordx2 {a(q+2,2)}, v{vTm+3}, {s(rWS,4)}, {s(sT3)} offen offset:{T*256} {sc1}", "q")
    A.i("s_mov_b32 exec_hi, 0")
    for T in range(2):
        q = aQ + T*8
        A.vm(f"buffer_load_dwordx2 {a(q+4,2)}, v{vTm+4}, {s(rWS,4)}, {s(sT2)} offen offset:{T*256} {sc1}", "q")
    A.i("s_mov_b64 exec, -1")
    A.i(f"v_lshlrev_b32 v{vTm+5}, 3, v0")
    A.i(f"v_mov_b32 v{vTm+6}, 0x3f803f80")
    A.i(f"v_mov_b32 v{vTm+7}, 0x3f803f80")
    A.i(f"v_add_u32 v{vTm+10}, {ONES0}, v{vTm+5}")
    A.i(f"v_add_u32 v{vTm+11}, {BOFF}, v{vTm+5}")
    A.ds(f"ds_write_b64 v{vTm+10}, {v(vTm+6,2)}")
    A.ds(f"ds_write_b64 v{vTm+10}, {v(vTm+6,2)} offset:{ONES1-ONES0}")
    A.i(f"s_lshl_b32 {s(sT2)}, {s(sQB)}, 7")
    A.i(f"s_sub_u32 {s(sT2)}, 256, {s(sT2)}")
    A.i(f"v_mov_b32 v{vTm+8}, 0xf149")
    A.i(f"v_mov_b32 v{vTm+9}, 0")
    A.i(f"v_cmp_gt_i32 vcc, {s(sT2)}, v0")
    A.i("s_nop 1")
    A.i(f"v_cndmask_b32 v{vTm+8}, 0, v{vTm+8}, vcc")
    A.ds(f"ds_write_b64 v{vTm+11}, {v(vTm+8,2)}")
    A.i(f"v_cmp_gt_u32 vcc, 128, v0")
    A.i(f"v_mov_b32 v{vTm+12}, 0")
    A.i(f"v_mov_b32 v{vTm+13}, 0")
    A.i("s_and_saveexec_b64 s[72:73], vcc")
    A.ds(f"ds_write_b64 v{vTm+10}, {v(vTm+6,2)} offset:2048")
    A.ds(f"ds_write_b64 v{vTm+10}, {v(vTm+6,2)} offset:{ONES1-ONES0+2048}")
    A.ds(f"ds_write_b64 v{vTm+11}, {v(vTm+12,2)} offset:2048")
    A.i("s_mov_b64 exec, s[72:73]")
    A.i(f"v_lshlrev_b32 v{vTm+5}, 2, v{vHI}")
    A.i(f"v_mov_b32 v{vTm+7}, 0xf149f2ca")
    for r in range(16):
        A.i(f"v_add_u32 v{vTm+6}, {8*(r//4) + r%4}, v{vTm+5}")
        A.i(f"v_cmp_gt_u32 vcc, v{vTm+6}, v{vJQ}")
        A.i("s_nop 1")
        A.i(f"v_cndmask_b32 v{vMF+r}, v{vTm+7}, 0, vcc")
        A.i(f"v_cndmask_b32 v{vMD+r}, 0, v{vTm+7}, vcc")

def p3_compute(A, st_flags="", st2=None, after_staged=None, side=None):
    side = side if side is not None else []
    vHI = vTm + 1; vJQ = vTm + 2
    A.wait_vm("q")
    A.wait_lg(None)
    if after_staged: after_staged()
    A.i("s_barrier")
    vKA, vKB, vVA = vTm+3, vTm+4, vTm+5
    A.i(f"s_mul_i32 {s(sT0)}, {s(sHH)}, {5*3072}")
    A.i(f"s_lshl_b32 {s(sT1)}, {s(sQH)}, 9")
    A.i(f"s_add_u32 {s(sT0)}, {s(sT0)}, {s(sT1)}")
    A.i(f"v_mul_u32_u24 v{vKA}, {2*3072}, v{vHI}")
    A.i(f"v_lshl_add_u32 v{vKA}, v{vJQ}, 3, v{vKA}")
    A.i(f"v_add_u32 v{vKA}, {s(sT0)}, v{vKA}")
    A.i(f"v_lshlrev_b32 v{vKB}, 3, v{vJQ}")
    A.i(f"v_add_u32 v{vTm+6}, {s(sT0)}, v{vKB}")
    A.i(f"s_add_u32 {s(sT2)}, {s(sT1)}, {BOFF}")
    A.i(f"v_add_u32 v{vKB}, {s(sT2)}, v{vKB}")
    A.i(f"v_and_b32 v{vTm+8}, 1, v{vQ}")
    A.i(f"v_and_b32 v{vTm+7}, 3, v{vJ}")
    A.i(f"v_lshl_add_u32 v{vTm+8}, v{vTm+8}, 2, v{vTm+7}")
    A.i(f"s_movk_i32 {s(sT3)}, {VST}")
    A.i(f"v_mul_lo_u32 v{vTm+9}, v{vTm+8}, {s(sT3)}")
    A.i(f"s_mul_i32 {s(sT3)}, {s(sHH)}, {5*VST}")
    A.i(f"s_add_u32 {s(sT3)}, {s(sT3)}, {VOFF}")
    A.i(f"v_add_u32 v{vTm+9}, {s(sT3)}, v{vTm+9}")
    A.i(f"s_mul_i32 {s(sT3)}, {s(sHH)}, {ONES1-ONES0}")
    A.i(f"s_add_u32 {s(sT3)}, {s(sT3)}, {ONES0}")
    A.i(f"v_mov_b32 v{vTm+10}, {s(sT3)}")
    A.i(f"v_cmp_gt_u32 vcc, 5, v{vTm+8}")
    A.i("s_nop 1")
    A.i(f"v_cndmask_b32 v{vTm+9}, v{vTm+10}, v{vTm+9}, vcc")
    A.i(f"v_lshrrev_b32 v{vTm+7}, 2, v{vJ}")
    A.i(f"v_lshl_add_u32 v{vTm+7}, v{vHI}, 2, v{vTm+7}")
    A.i(f"v_lshl_add_u32 v{vVA}, v{vTm+7}, 3, v{vTm+9}")
    A.i(f"v_add_u32 v{vVA}, {s(sT1)}, v{vVA}")
    for k in range(10):
        f0 = aK + 8*k
        A.ds(f"ds_read_b64 {a(f0,2)}, v{vKA} offset:{KOFF + k*256}", ("k", k))
        A.ds(f"ds_read_b64 {a(f0+2,2)}, v{vKA} offset:{KOFF + 3072 + k*256}", ("k", k))
        A.ds(f"ds_read_b64 {a(f0+4,2)}, v{vTm+6} offset:{KOFF + 4*3072 + k*256}", ("k", k))
        A.ds(f"ds_read_b64 {a(f0+6,2)}, v{vKB} offset:{k*256}", ("k", k))
    vreads = []
    for k in range(10):
        for m in range(2):
            f = aV + 8*k + 4*m
            vreads.append(f"ds_read_b64_tr_b16 {a(f,2)}, v{vVA} offset:{k*256 + m*128}")
            vreads.append(f"ds_read_b64_tr_b16 {a(f+2,2)}, v{vVA} offset:{k*256 + m*128 + 64}")
    if st2: st2(2)
    vM, vM2 = vTm+11, vTm+12
    def pop_side(n=1):
        for _ in range(n):
            if side: side.pop(0)()
    for T in range(2):
        q0, q1 = a(aQ+T*8, 4), a(aQ+T*8+4, 4)
        A.c(f"---- P3 tile {T} pass 1")
        def sreg(t): return vSF if t == 0 else (vSD if t == 8 else vS[t % 3])
        A.i(f"v_mov_b32 v{vM}, 0xf149f2ca")
        def maxops(t):
            r = sreg(t)
            for e in range(0, 16, 2):
                A.i(f"v_max3_f32 v{vM}, v{r+e}, v{r+e+1}, v{vM}")
        for t in range(9):
            k = T + t
            A.wait_lg(("k", k))
            d = v(sreg(t), 16)
            c = v(vMF, 16) if t == 0 else (v(vMD, 16) if t == 8 else "0")
            A.i(f"v_mfma_f32_32x32x16_bf16 {d}, {a(aK+8*k,4)}, {q0}, {c}")
            for _ in range(3):
                if vreads: A.ds(vreads.pop(0), "v")
            A.i(f"v_mfma_f32_32x32x16_bf16 {d}, {a(aK+8*k+4,4)}, {q1}, {d}")
            for _ in range(2):
                if vreads: A.ds(vreads.pop(0), "v")
            if t >= 2: maxops(t-2)
            if T == 1: pop_side(2)
        while vreads: A.ds(vreads.pop(0), "v")
        A.nop(2); maxops(7)
        A.nop(4); maxops(8)
        A.i(f"v_mov_b32 v{vM2}, v{vM}")
        A.i("s_nop 1")
        A.i(f"v_permlane32_swap_b32 v{vM}, v{vM2}")
        A.i("s_nop 1")
        A.i(f"v_max_f32 v{vM}, v{vM}, v{vM2}")
        for r in range(16):
            A.i(f"v_sub_f32 v{vNM+r}, 0, v{vM}")
        if st2 and T == 0: st2(3)
        A.c(f"---- P3 tile {T} pass 2")
        A.wait_lg("v")
        o = v(vO[T], 16)
        order = [0, 1, 2, 3, 4, 5, 6, 7, 8]
        def stageA(t):
            if t in (0, 8): return []
            k = T + t
            d = v(vS[t % 3], 16)
            return [f"v_mfma_f32_32x32x16_bf16 {d}, {a(aK+8*k,4)}, {q0}, {v(vNM,16)}",
                    f"v_mfma_f32_32x32x16_bf16 {d}, {a(aK+8*k+4,4)}, {q1}, {d}"]
        def stageC(n):
            t = order[n]; k = T + t; P = vP[n % 2]
            return [f"v_mfma_f32_32x32x16_bf16 {o}, {a(aV+8*k,4)}, {v(P,4)}, {'0' if n == 0 else o}",
                    f"v_mfma_f32_32x32x16_bf16 {o}, {a(aV+8*k+4,4)}, {v(P+4,4)}, {o}"]
        A.nop(2)
        for ins in stageA(1): A.i(ins)
        for n, t in enumerate(order):
            r = sreg(t); P = vP[n % 2]
            mf = []
            if n >= 1: mf += stageC(n-1)
            if n + 1 < len(order) and n >= 1: mf += stageA(order[n+1])
            valu = []
            if t in (0, 8):
                for e in range(16): valu.append((f"v_sub_f32 v{r+e}, v{r+e}, v{vM}", 4))
            for e in range(8):
                valu.append((f"v_exp_f32 v{r+2*e}, v{r+2*e}", 8))
                valu.append((f"v_exp_f32 v{r+2*e+1}, v{r+2*e+1}", 8))
                if e >= 1: valu.append((f"v_cvt_pk_bf16_f32 v{P+e-1}, v{r+2*e-2}, v{r+2*e-1}", 4))
            valu.append(("s_nop 0", 4))
            valu.append((f"v_cvt_pk_bf16_f32 v{P+7}, v{r+14}, v{r+15}", 4))
            tot = sum(c for _, c in valu)
            acc = 0; k = 0
            for ins, c in valu:
                while k < len(mf) and acc >= k * tot / max(len(mf), 1):
                    A.i(mf[k]); k += 1
                A.i(ins); acc += c
            while k < len(mf): A.i(mf[k]); k += 1
            pop_side(3)
        A.nop(2)
        for ins in stageC(len(order)-1): A.i(ins)
    while side: side.pop(0)()
    A.c("---- P3 output")
    if st2: st2(4)
    A.nop(14)
    vOA, vU = vTm+3, vTm+4
    A.i(f"s_mul_i32 {s(sT0)}, {s(sHH)}, 5")
    A.i(f"v_add_u32 v{vU}, {s(sT0)}, v{vHI}")
    A.i(f"v_lshrrev_b32 v{vOA}, 1, v{vU}")
    A.i(f"v_lshlrev_b32 v{vOA}, 8, v{vOA}")
    A.i(f"v_and_b32 v{vU}, 1, v{vU}")
    A.i(f"v_lshl_add_u32 v{vOA}, v{vU}, 3, v{vOA}")
    A.i(f"v_and_b32 v{vU}, 1, v{vJQ}")
    A.i(f"v_mul_u32_u24 v{vU}, 1280, v{vU}")
    A.i(f"v_add_u32 v{vOA}, v{vOA}, v{vU}")
    A.i(f"v_lshrrev_b32 v{vU}, 1, v{vJQ}")
    A.i(f"v_lshl_add_u32 v{vOA}, v{vU}, 4, v{vOA}")
    A.i(f"s_mul_i32 {s(sT0)}, {s(sQH)}, {4*1280}")
    A.i(f"s_add_u32 {s(sT0)}, {s(sT0)}, {OST}")
    A.i(f"v_add_u32 v{vOA}, {s(sT0)}, v{vOA}")
    for T in range(2):
        o = vO[T]
        la, lb = vTm+6, vTm+7
        A.i(f"v_mov_b32 v{la}, v{o+8}")
        A.i(f"v_mov_b32 v{lb}, v{o+8}")
        A.i("s_nop 1")
        A.i(f"v_permlane32_swap_b32 v{la}, v{lb}")
        A.i("s_nop 1")
        A.i(f"v_rcp_f32 v{lb}, v{lb}")
        A.i("s_nop 0")
        for r in range(12):
            A.i(f"v_mul_f32 v{o+r}, v{lb}, v{o+r}")
        for t in range(3):
            A.i(f"v_cvt_pk_bf16_f32 v{o+4*t}, v{o+4*t}, v{o+4*t+1}")
            A.i(f"v_cvt_pk_bf16_f32 v{o+4*t+1}, v{o+4*t+2}, v{o+4*t+3}")
        A.ds(f"ds_write_b64 v{vOA}, {v(o,2)} offset:{T*2560}")
        A.ds(f"ds_write_b64 v{vOA}, {v(o+4,2)} offset:{T*2560+256}")
        A.i("s_mov_b32 exec_hi, 0")
        A.ds(f"ds_write_b64 v{vOA}, {v(o+8,2)} offset:{T*2560+512}")
        A.i("s_mov_b64 exec, -1")
    A.wait_lg(None)
    A.i("s_barrier")
    A.i(f"s_mul_i32 {s(sT0)}, {s(sQB)}, {8*20480}")
    A.i(f"s_mul_i32 {s(sT1)}, {s(sHP)}, {5*256}")
    A.i(f"s_add_u32 {s(sT0)}, {s(sT0)}, {s(sT1)}")
    A.i(f"s_add_u32 {s(sT0)}, {s(sT0)}, {OB_OFF}")
    A.i(f"s_mov_b32 {s(sT1)}, 52429")
    for rd in range(3):
        n, t1, t2, la = vTm+6, vTm+7, vTm+8, vTm+9
        A.i(f"v_add_u32 v{n}, {256*rd}, v0")
        A.i(f"v_lshlrev_b32 v{la}, 4, v{n}")
        A.i(f"v_add_u32 v{la+1}, {OST}, v{la}")
        A.ds(f"ds_read_b128 {v(32+4*rd,4)}, v{la+1}")
        A.i(f"v_mul_lo_u32 v{t1}, v{n}, {s(sT1)}")
        A.i(f"v_lshrrev_b32 v{t1}, 22, v{t1}")
        A.i(f"v_mul_u32_u24 v{t2}, {20480-1280}, v{t1}")
        A.i(f"v_add_u32 v{48+rd}, v{t2}, v{la}")
    A.wait_lg(None)
    for rd in range(3):
        if rd == 2:
            A.i("v_cmp_gt_u32 vcc, 128, v0")
            A.i("s_and_saveexec_b64 s[72:73], vcc")
            lab = A.newlabel("p3st")
            A.i(f"s_cbranch_execz {lab}")
            A.i(f"buffer_store_dwordx4 {v(32+4*rd,4)}, v{48+rd}, {s(rWS,4)}, {s(sT0)} offen {st_flags}")
            A.label(lab)
            A.i("s_mov_b64 exec, s[72:73]")
            A.ost_partial = True
        else:
            A.vm(f"buffer_store_dwordx4 {v(32+4*rd,4)}, v{48+rd}, {s(rWS,4)}, {s(sT0)} offen {st_flags}", "ost")
```

```python
from asmlib import *
from gen_common import *

sR, sCC = 14, 15
sHBASE, sOBASE, sWB, sXO = 40, 41, 42, 43
vACC4 = 64
vL16 = 244
vXR = 184
NRG = 7
SLOTS = [("a", 176), ("a", 212), ("v", 208), ("a", 0), ("a", 36), ("a", 72), ("a", 108)]
def ring_regs(n):
    k, base = SLOTS[n % NRG]
    f = a if k == "a" else v
    act = [f(base + rb*4, 4) for rb in range(4)]
    w = [f(base + 16 + cb*4, 4) for cb in range(5)]
    return act, w
NS = 19
def is_h(n): return n < 14

def p45_setup(A):
    A.c("==== P4/5 setup ====")
    A.i(f"s_lshr_b32 {s(sT0)}, {s(sXCD)}, 1")
    A.i(f"s_lshl_b32 {s(sT0)}, {s(sT0)}, 3")
    A.i(f"s_and_b32 {s(sT1)}, {s(sIDX)}, 7")
    A.i(f"s_add_u32 {s(sR)}, {s(sT0)}, {s(sT1)}")
    A.i(f"s_and_b32 {s(sT0)}, {s(sXCD)}, 1")
    A.i(f"s_lshl_b32 {s(sT0)}, {s(sT0)}, 2")
    A.i(f"s_lshr_b32 {s(sT1)}, {s(sIDX)}, 3")
    A.i(f"s_add_u32 {s(sCC)}, {s(sT0)}, {s(sT1)}")
    A.i(f"v_lshlrev_b32 v{vL16}, 4, v{vLANE}")
    A.i(f"s_mul_i32 {s(sHBASE)}, {s(sR)}, {4*55296}")
    A.i(f"s_add_u32 {s(sHBASE)}, {s(sHBASE)}, {HB_OFF}")
    A.i(f"s_lshl_b32 {s(sT0)}, {s(sWAVE)}, 10")
    A.i(f"s_add_u32 {s(sHBASE)}, {s(sHBASE)}, {s(sT0)}")
    A.i(f"s_mul_i32 {s(sOBASE)}, {s(sR)}, {4*20480}")
    A.i(f"s_add_u32 {s(sOBASE)}, {s(sOBASE)}, {OB_OFF}")
    A.i(f"s_add_u32 {s(sOBASE)}, {s(sOBASE)}, {s(sT0)}")
    A.i(f"s_mul_i32 {s(sWB)}, {s(sWAVE)}, 40")
    A.i(f"s_mul_i32 {s(sT0)}, {s(sCC)}, 5")
    A.i(f"s_add_u32 {s(sWB)}, {s(sWB)}, {s(sT0)}")
    A.i(f"s_lshl_b32 {s(sWB)}, {s(sWB)}, 10")
    A.i(f"s_add_u32 {s(sWB)}, {s(sWB)}, {WT_OFF}")
    A.i(f"s_lshl_b32 {s(sT0)}, {s(sR)}, 6")
    A.i(f"s_lshr_b32 {s(sT1)}, {s(sWAVE)}, 1")
    A.i(f"s_lshl_b32 {s(sT1)}, {s(sT1)}, 5")
    A.i(f"s_add_u32 {s(sT0)}, {s(sT0)}, {s(sT1)}")
    A.i(f"s_and_b32 {s(sT1)}, {s(sWAVE)}, 1")
    A.i(f"s_add_u32 {s(sT0)}, {s(sT0)}, {s(sT1)}")
    A.i(f"s_mul_i32 {s(sT0)}, {s(sT0)}, 1280")
    A.i(f"s_mul_i32 {s(sT1)}, {s(sCC)}, 160")
    A.i(f"s_add_u32 {s(sXO)}, {s(sT0)}, {s(sT1)}")
    A.i(f"s_lshr_b32 {s(sRH)}, {s(sR)}, 1")

def loads(n, which, sc1=""):
    L = []
    act, w = ring_regs(n)
    if which == "w":
        ksg0 = 4*n if is_h(n) else 54 + 4*(n-14)
        off = ksg0 * 40 * 1024
        if n == 13:
            L.append(("i", f"s_cmp_lt_u32 {s(sWAVE)}, 2"))
            L.append(("i", f"s_cselect_b32 {s(sP0)}, {off}, 0x40000000"))
            L.append(("i", f"s_add_u32 {s(sP0)}, {s(sP0)}, {s(sWB)}"))
        else:
            L.append(("i", f"s_add_u32 {s(sP0)}, {s(sWB)}, {off}"))
        for cb in range(4):
            L.append(("vm", f"buffer_load_dwordx4 {w[cb]}, v{vL16}, {s(rWS,4)}, {s(sP0)} offen offset:{cb*1024} {sc1}", ("w", n)))
        L.append(("i", f"s_add_u32 {s(sP0)}, {s(sP0)}, 4096"))
        L.append(("vm", f"buffer_load_dwordx4 {w[4]}, v{vL16}, {s(rWS,4)}, {s(sP0)} offen {sc1}", ("w", n)))
    else:
        for rb in range(4):
            if is_h(n):
                off = n*4096 + rb*55296
                if n == 13:
                    L.append(("i", f"s_cmp_lt_u32 {s(sWAVE)}, 2"))
                    L.append(("i", f"s_cselect_b32 {s(sP1)}, {off}, 0x40000000"))
                    L.append(("i", f"s_add_u32 {s(sP1)}, {s(sP1)}, {s(sHBASE)}"))
                else:
                    L.append(("i", f"s_add_u32 {s(sP1)}, {s(sHBASE)}, {off}"))
            else:
                off = (n-14)*4096 + rb*20480
                L.append(("i", f"s_add_u32 {s(sP1)}, {s(sOBASE)}, {off}"))
            L.append(("vm", f"buffer_load_dwordx4 {act[rb]}, v{vL16}, {s(rWS,4)}, {s(sP1)} offen {sc1}", ("a", n)))
    return L

def as_closures(A, L):
    out = []
    for x in L:
        if x[0] == "i": out.append(lambda x=x: A.i(x[1]))
        elif x[0] == "call": out.append(x[1])
        else: out.append(lambda x=x: A.vm(x[1], x[2]))
    return out

def p45(A, done_w=0, done_a=0, wait_h=None, wait_o=None, sc1="", after_first=None, at_step={}):
    def emit1(x):
        if x[0] == "i": A.i(x[1])
        elif x[0] == "call": x[1]()
        else: A.vm(x[1], x[2])
    DP = NRG - 1
    for n in range(done_w, DP):
        for x in loads(n, "w", sc1): emit1(x)
    if wait_h: wait_h()
    for n in range(done_a, DP):
        for x in loads(n, "a", sc1): emit1(x)
    vXO = 24
    A.i(f"v_mul_u32_u24 v{vXO}, 2560, v{vJ}")
    A.i(f"v_lshl_add_u32 v{vXO}, v{vQ}, 3, v{vXO}")
    for cb in range(5):
        A.vm(f"buffer_load_dwordx2 {v(vXR+2*cb,2)}, v{vXO}, {s(rX,4)}, {s(sXO)} offen offset:{cb*32}", "xr")
    for n in range(NS):
        A.wait_vm(("w", n))
        A.wait_vm(("a", n))
        if n == 3 and after_first: after_first()
        if n in at_step: at_step[n]()
        side = []
        nn = n + DP
        if nn < NS:
            side += loads(nn, "w", sc1)
            if nn == 14 and wait_o: side.append(("call", wait_o))
            side += loads(nn, "a", sc1)
        act, w = ring_regs(n)
        mi = 0
        for cb in range(5):
            for rb in range(4):
                d = v(vACC4 + (rb*5 + cb)*4, 4)
                A.i(f"v_mfma_f32_16x16x32_bf16 {d}, {w[cb]}, {act[rb]}, {'0' if n == 0 else d}")
                if side and mi >= 1:
                    emit1(side.pop(0))
                mi += 1
        while side: emit1(side.pop(0))
    A.c("---- P4/5 reduction")
    A.nop(8)
    A.i(f"s_mul_i32 {s(sT1)}, {s(sWAVE)}, 20480")
    A.i(f"v_add_u32 v{vXO+1}, {s(sT1)}, v{vL16}")
    for tl in range(20):
        A.ds(f"ds_write_b128 v{vXO+1}, {v(vACC4+tl*4,4)} offset:{tl*1024}")
    A.wait_lg(None)
    A.i("s_barrier")
    A.i(f"s_mul_i32 {s(sT1)}, {s(sWAVE)}, 5120")
    A.i(f"v_add_u32 v{vXO+1}, {s(sT1)}, v{vL16}")
    A.i(f"v_add_u32 v{vXO+2}, {2*20480}, v{vXO+1}")
    for ww in range(4):
        for cb in range(5):
            base = vXO+1 if ww < 2 else vXO+2
            A.ds(f"ds_read_b128 {v(vACC4 + (ww*5+cb)*4, 4)}, v{base} offset:{(ww%2)*20480 + cb*1024}")
    A.wait_lg(None)
    A.wait_vm("xr")
    for cb in range(5):
        for r in range(4):
            d = vACC4 + cb*4 + r
            A.i(f"v_add_f32 v{d}, v{d}, v{d+20}")
            A.i(f"v_add_f32 v{d+40}, v{d+40}, v{d+60}")
        for r in range(4):
            d = vACC4 + cb*4 + r
            A.i(f"v_add_f32 v{d}, v{d}, v{d+40}")
        x = vXR + 2*cb
        t = 28
        A.i(f"v_lshlrev_b32 v{t}, 16, v{x}")
        A.i(f"v_and_b32 v{t+1}, 0xffff0000, v{x}")
        A.i(f"v_lshlrev_b32 v{t+2}, 16, v{x+1}")
        A.i(f"v_and_b32 v{t+3}, 0xffff0000, v{x+1}")
        for r in range(4):
            d = vACC4 + cb*4 + r
            A.i(f"v_add_f32 v{d}, v{d}, v{t+r}")
        d = vACC4 + cb*4
        A.i(f"v_cvt_pk_bf16_f32 v{x}, v{d}, v{d+1}")
        A.i(f"v_cvt_pk_bf16_f32 v{x+1}, v{d+2}, v{d+3}")
        A.vm(f"buffer_store_dwordx2 {v(x,2)}, v{vXO}, {s(rOUT,4)}, {s(sXO)} offen offset:{cb*32}", "out")

def repack_issue(A, RSCR, vA, sU, sV):
    A.c("---- repack issue")
    A.i(f"s_lshl_b32 {s(sU)}, s2, 2")
    A.i(f"s_add_u32 {s(sU)}, {s(sU)}, {s(sWAVE)}")
    A.i(f"s_mul_i32 {s(sT0)}, {s(sU)}, 6554")
    A.i(f"s_lshr_b32 {s(sT0)}, {s(sT0)}, 16")
    A.i(f"s_mul_i32 {s(sT1)}, {s(sT0)}, 10")
    A.i(f"s_sub_u32 {s(sT1)}, {s(sU)}, {s(sT1)}")
    A.i(f"s_mul_i32 {s(sV)}, {s(sT0)}, 40")
    A.i(f"s_lshl_b32 {s(sT2)}, {s(sT1)}, 2")
    A.i(f"s_add_u32 {s(sV)}, {s(sV)}, {s(sT2)}")
    A.i(f"s_lshl_b32 {s(sV)}, {s(sV)}, 10")
    A.i(f"s_add_u32 {s(sV)}, {s(sV)}, {WT_OFF}")
    A.i(f"s_cmp_lt_u32 {s(sU)}, 740")
    A.i(f"s_cselect_b32 {s(sV)}, {s(sV)}, 0x40000000")
    A.i(f"s_cmp_lt_u32 {s(sT0)}, 54")
    A.i(f"s_cselect_b32 {s(rTMP)}, {s(rWD)}, {s(rWO)}")
    A.i(f"s_cselect_b32 {s(rTMP+1)}, {s(rWD+1)}, {s(rWO+1)}")
    A.i(f"s_cselect_b32 {s(rTMP+2)}, {s(rWD+2)}, {s(rWO+2)}")
    A.i(f"s_mov_b32 {s(rTMP+3)}, 0x00020000")
    A.i(f"s_cselect_b32 {s(sT2)}, 0, 54")
    A.i(f"s_sub_u32 {s(sT0)}, {s(sT0)}, {s(sT2)}")
    A.i(f"s_mul_i32 {s(sT0)}, {s(sT0)}, {32*1280}")
    A.i(f"s_lshl_b32 {s(sT1)}, {s(sT1)}, 7")
    A.i(f"s_add_u32 {s(sT0)}, {s(sT0)}, {s(sT1)}")
    A.i(f"v_lshrrev_b32 v{vA}, 3, v{vLANE}")
    A.i(f"v_mul_u32_u24 v{vA}, 1280, v{vA}")
    A.i(f"v_and_b32 v{vA+1}, 7, v{vLANE}")
    A.i(f"v_lshl_add_u32 v{vA}, v{vA+1}, 4, v{vA}")
    A.i(f"s_lshl_b32 {s(sT1)}, {s(sWAVE)}, 12")
    for i in range(4):
        A.i(f"s_add_u32 m0, {s(sT1)}, {RSCR + i*1024}")
        A.i(f"s_add_u32 {s(sT2)}, {s(sT0)}, {i*8*1280}")
        A.vm(f"buffer_load_dwordx4 v{vA}, {s(rTMP,4)}, {s(sT2)} offen lds", "rp")

def repack_finish(A, RSCR, vA, vD, sV):
    A.c("---- repack finish")
    A.wait_vm("rp")
    A.i(f"v_lshrrev_b32 v{vA}, 2, v{vJ}")
    A.i(f"v_lshl_add_u32 v{vA}, v{vQ}, 3, v{vA}")
    A.i(f"v_lshlrev_b32 v{vA}, 7, v{vA}")
    A.i(f"v_and_b32 v{vA+1}, 3, v{vJ}")
    A.i(f"v_lshl_add_u32 v{vA}, v{vA+1}, 3, v{vA}")
    A.i(f"s_lshl_b32 {s(sT1)}, {s(sWAVE)}, 12")
    A.i(f"s_add_u32 {s(sT1)}, {s(sT1)}, {RSCR}")
    A.i(f"v_add_u32 v{vA}, {s(sT1)}, v{vA}")
    for cb in range(4):
        A.ds(f"ds_read_b64_tr_b16 {v(vD+cb*4,2)}, v{vA} offset:{cb*32}", "rpf")
        A.ds(f"ds_read_b64_tr_b16 {v(vD+cb*4+2,2)}, v{vA} offset:{512 + cb*32}", "rpf")
    A.i(f"v_lshlrev_b32 v{vA+1}, 4, v{vLANE}")
    A.wait_lg("rpf")
    for cb in range(4):
        A.vm(f"buffer_store_dwordx4 {v(vD+cb*4,4)}, v{vA+1}, {s(rWS,4)}, {s(sV)} offen offset:{cb*1024} sc1", "rps")
```

```python
import sys, math
from asmlib import *

from gen_common import *
SLOT = 33792
REG = 16896
MISC = 4 * SLOT
STATS = MISC
CS1 = MISC + 1024
CS2 = MISC + 1536

def srd(A, r, p, nbytes, off=0):
    if off:
        A.i(f"s_add_u32 {s(r)}, {s(p)}, {off}")
        A.i(f"s_addc_u32 {s(r+1)}, {s(p+1)}, 0")
    else:
        A.i(f"s_mov_b32 {s(r)}, {s(p)}")
        A.i(f"s_mov_b32 {s(r+1)}, {s(p+1)}")
    A.i(f"s_mov_b32 {s(r+2)}, {nbytes}")
    A.i(f"s_mov_b32 {s(r+3)}, 0x00020000")

def prologue(A, name, nwg=256):
    A.raw(f".globl {name}")
    A.raw(".p2align 8")
    A.raw(f".type {name},@function")
    A.label(name)
    A.i(f"s_cmp_ge_u32 s2, {nwg}")
    A.i(f"s_cbranch_scc1 {name}_end")
    stamp(A, 0)
    A.i("s_load_dwordx16 s[16:31], s[0:1], 0")
    A.i("s_load_dwordx4 s[32:35], s[0:1], 64")
    A.i(f"s_and_b32 {s(sXCD)}, s2, 7")
    A.i(f"s_lshr_b32 {s(sIDX)}, s2, 3")
    A.i("v_lshrrev_b32 v4, 6, v0")
    A.i("v_and_b32 v1, 63, v0")
    A.i(f"v_readfirstlane_b32 {s(sWAVE)}, v4")
    A.i("v_and_b32 v2, 15, v1")
    A.i("v_lshrrev_b32 v3, 4, v1")
    A.i("s_waitcnt lgkmcnt(0)")
    srd(A, rX, pX, S_*D_*2)
    srd(A, rWQKV, pWQKV, D_*3*D_*2)
    srd(A, rWG, pWG, D_*F_*2)
    srd(A, rWU, pWU, D_*F_*2)
    srd(A, rWS, pWS, WS_USED)
    srd(A, rWD, pWD, F_*D_*2)
    srd(A, rWO, pWO, D_*D_*2)
    srd(A, rOUT, pOUT, S_*D_*2)

STAMPS = False
NOROT = False
DBG = set()
STAMP_REGS = [68, 16, 18, 20, 22, 24]
STAMP_OFF = 0x1600000
def stamp(A, idx, fine=True):
    if STAMPS:
        A.i(f"s_memrealtime {s(STAMP_REGS[idx],2)}")
STAMP_K = [0]
def stamp_flush(A):
    if not STAMPS: return
    A.i("s_waitcnt lgkmcnt(0)")
    srd(A, rX, pWS, 0x1700000)
    A.i(f"s_lshl_b32 {s(sT0)}, s2, 2")
    A.i(f"s_add_u32 {s(sT0)}, {s(sT0)}, {s(sWAVE)}")
    A.i(f"s_lshl_b32 {s(sT0)}, {s(sT0)}, 5")
    A.i(f"s_add_u32 {s(sT0)}, {s(sT0)}, {STAMP_OFF + STAMP_K[0]*0x10000}")
    STAMP_K[0] += 1
    A.i("v_mov_b32 v4, 0")
    A.i("s_mov_b64 exec, 1")
    for k, r in enumerate(STAMP_REGS):
        A.i(f"v_mov_b32 v5, {s(r)}")
        A.i(f"buffer_store_dword v5, v4, {s(rX,4)}, {s(sT0)} offen offset:{k*4}")
        A.i("s_nop 1")
    A.i("s_mov_b64 exec, -1")

FQ, FH, FO = 0, 4096, 8192
SPIN_MAX = 200000
def make_dbg_srd(A):
    srd(A, rDBG, pDBG, 256)
def epoch_publish(A, vtmp):
    lab = A.newlabel("epub")
    A.i(f"s_add_u32 {s(sT0)}, s2, {s(sWAVE)}")
    A.i(f"s_cmp_lg_u32 {s(sT0)}, 0")
    A.i(f"s_cbranch_scc1 {lab}")
    A.i(f"s_memrealtime {s(sEPT,2)}")
    A.i("s_waitcnt lgkmcnt(0)")
    A.i(f"s_or_b32 {s(sEPT)}, {s(sEPT)}, 1")
    A.i(f"v_mov_b32 v{vtmp}, {s(sEPT)}")
    A.i(f"v_mov_b32 v{vtmp+1}, 0")
    A.i("s_mov_b64 exec, 1")
    A.i(f"buffer_store_dword v{vtmp}, v{vtmp+1}, {s(rDBG,4)}, 0 offen sc1")
    A.i("s_mov_b64 exec, -1")
    A.label(lab)
def epoch_issue(A, vaddr, vdst):
    A.i(f"v_mov_b32 v{vaddr}, 0")
    A.vm(f"buffer_load_dword v{vdst}, v{vaddr}, {s(rDBG,4)}, 0 offen sc1", "ep")
def epoch_check(A, vaddr, vdst):
    ok = A.newlabel("epok"); lp = A.newlabel("epspin")
    A.wait_vm("ep")
    A.i(f"v_cmp_eq_u32 vcc, 0, v{vdst}")
    A.i(f"s_cbranch_vccz {ok}")
    A.i(f"s_mov_b32 {s(sT4)}, {SPIN_MAX}")
    A.label(lp)
    A.i("s_sleep 2")
    A.i(f"buffer_load_dword v{vdst}, v{vaddr}, {s(rDBG,4)}, 0 offen sc1")
    A.i("s_waitcnt vmcnt(0)")
    A.i(f"v_cmp_eq_u32 vcc, 0, v{vdst}")
    A.i(f"s_cbranch_vccz {ok}")
    A.i(f"s_sub_u32 {s(sT4)}, {s(sT4)}, 1")
    A.i(f"s_cmp_lg_u32 {s(sT4)}, 0")
    A.i(f"s_cbranch_scc1 {lp}")
    A.label(ok)
    A.i(f"v_readfirstlane_b32 {s(sEP)}, v{vdst}")
def signal(A, base, srow, sslot, vtmp):
    A.i(f"s_lshl_b32 {s(sT4)}, {s(srow)}, 8")
    A.i(f"s_lshl_b32 {s(sT3)}, {s(sslot)}, 4")
    A.i(f"s_add_u32 {s(sT4)}, {s(sT4)}, {s(sT3)}")
    A.i(f"s_lshl_b32 {s(sT3)}, {s(sWAVE)}, 2")
    A.i(f"s_add_u32 {s(sT4)}, {s(sT4)}, {s(sT3)}")
    A.i(f"s_add_u32 {s(sT4)}, {s(sT4)}, {FLG_OFF + base}")
    A.i(f"v_mov_b32 v{vtmp}, {s(sEP)}")
    A.i(f"v_mov_b32 v{vtmp+1}, 0")
    A.i("s_mov_b64 exec, 1")
    A.vm(f"buffer_store_dword v{vtmp}, v{vtmp+1}, {s(rWS,4)}, {s(sT4)} offen sc1", "sig")
    A.i("s_mov_b64 exec, -1")
def poll_issue(A, vaddr, vdst, tag, n=1):
    A.i(f"s_mov_b32 {s(sT4)}, {FLG_OFF}")
    for k in range(n):
        A.vm(f"buffer_load_dwordx4 {v(vdst+4*k,4)}, v{vaddr}, {s(rWS,4)}, {s(sT4)} offen offset:{k*1024} sc1", tag)
def poll_check(A, vaddr, vdst, tag, n=1):
    ok = A.newlabel("pollok"); lp = A.newlabel("pollspin")
    def test():
        for k in range(4*n):
            A.i(f"v_xor_b32 v{vdst+k}, {s(sEP)}, v{vdst+k}")
        for k in range(1, 4*n):
            A.i(f"v_or_b32 v{vdst}, v{vdst}, v{vdst+k}")
        A.i(f"v_cmp_ne_u32 vcc, 0, v{vdst}")
        A.i(f"s_cbranch_vccz {ok}")
    A.wait_vm(tag)
    test()
    A.i(f"s_mov_b32 {s(sT3)}, {SPIN_MAX}")
    A.label(lp)
    A.i("s_sleep 2")
    A.i(f"s_mov_b32 {s(sT4)}, {FLG_OFF}")
    for k in range(n):
        A.i(f"buffer_load_dwordx4 {v(vdst+4*k,4)}, v{vaddr}, {s(rWS,4)}, {s(sT4)} offen offset:{k*1024} sc1")
    A.i("s_waitcnt vmcnt(0)")
    test()
    A.i(f"s_sub_u32 {s(sT3)}, {s(sT3)}, 1")
    A.i(f"s_cmp_lg_u32 {s(sT3)}, 0")
    A.i(f"s_cbranch_scc1 {lp}")
    A.label(ok)

def kernel_footer(A, name):
    A.label(f"{name}_end")
    A.i("s_endpgm")

def descriptor(name, vgpr=512, accum=256):
    return f""".p2align 6
.amdhsa_kernel {name}
  .amdhsa_next_free_vgpr {vgpr}
  .amdhsa_next_free_sgpr 102
  .amdhsa_accum_offset {accum}
  .amdhsa_group_segment_fixed_size 0
  .amdhsa_kernarg_size 80
  .amdhsa_user_sgpr_count 2
  .amdhsa_user_sgpr_kernarg_segment_ptr 1
  .amdhsa_system_sgpr_workgroup_id_x 1
.end_amdhsa_kernel
"""

vLANE, vJ, vQ = 1, 2, 3
vOFX = 4
vOFW = 8
vOFG = 12
vXLO, vXHI, vXLOc, vXHIc = 16, 17, 18, 19
vWLO, vWHI, vWLOc, vWHIc = 20, 21, 22, 23
vMEAN, vRSTD = 24, 28
vT = 32
vTXo, vTWo, vTGo = 160, 161, 162
TSCR = MISC + 4096
RSCR = MISC + 8192
REPACK = True
HOOK = {}
sTS = 91
vONES = 36
vWR = 40
NRING = 6
vACC = 64
vST = 128
vCS1 = 144
vCS2 = 176
vXF = 192

def xfrag(T, rb):
    n = T * 4 + rb
    if n < 64:
        return a(n * 4, 4)
    return v(vXF + (n - 64) * 4, 4)

def mfma16(A, d, x, y, c):
    A.i(f"v_mfma_f32_16x16x32_bf16 {d}, {x}, {y}, {c}")

def phase12(A, ROT=True):
    A.c("==== phase 1/2 setup ====")
    A.i(f"s_and_b32 {s(sT0)}, {s(sXCD)}, 1")
    A.i(f"s_lshl_b32 {s(sT0)}, {s(sT0)}, 3")
    A.i(f"s_and_b32 {s(sT1)}, {s(sIDX)}, 7")
    A.i(f"s_add_u32 {s(sRT)}, {s(sT0)}, {s(sT1)}")
    A.i(f"s_lshr_b32 {s(sT0)}, {s(sXCD)}, 1")
    A.i(f"s_lshl_b32 {s(sT0)}, {s(sT0)}, 2")
    A.i(f"s_lshr_b32 {s(sT2)}, {s(sIDX)}, 3")
    A.i(f"s_add_u32 {s(sCT)}, {s(sT0)}, {s(sT2)}")
    A.i(f"s_lshr_b32 {s(sWM)}, {s(sWAVE)}, 1")
    A.i(f"s_and_b32 {s(sWN)}, {s(sWAVE)}, 1")
    if ROT:
        A.i(f"s_mul_i32 {s(sROT)}, {s(sT1)}, 5")
        A.i(f"s_lshr_b32 {s(sROT)}, {s(sROT)}, 2")
        A.i(f"s_mul_i32 {s(sT3)}, {s(sT2)}, 5")
        A.i(f"s_lshr_b32 {s(sT3)}, {s(sT3)}, 1")
        A.i(f"s_add_u32 {s(sROT)}, {s(sROT)}, {s(sT3)}")
        A.i(f"s_cmp_ge_u32 {s(sROT)}, 10")
        A.i(f"s_cselect_b32 {s(sT3)}, 10, 0")
        A.i(f"s_sub_u32 {s(sROT)}, {s(sROT)}, {s(sT3)}")
    else:
        A.i(f"s_mov_b32 {s(sROT)}, 0")
    A.i(f"v_and_b32 v{vT}, 3, v{vJ}")
    A.i(f"v_cmp_eq_u32 {s(sM1,2)}, 1, v{vT}")
    A.i(f"v_cmp_eq_u32 {s(sM2,2)}, 2, v{vT}")
    A.i(f"v_cmp_eq_u32 {s(sM3,2)}, 3, v{vT}")
    A.i(f"v_lshrrev_b32 v{vT+1}, 2, v{vJ}")
    A.i(f"v_cmp_eq_u32 {s(sDIAG,2)}, v{vT+1}, v{vQ}")
    A.i(f"v_cmp_eq_u32 {s(sJ0,2)}, 0, v{vJ}")
    A.i(f"v_lshrrev_b32 v{vT}, 3, v{vLANE}")
    A.i(f"v_lshrrev_b32 v{vT+1}, 1, v{vT}")
    A.i(f"v_lshlrev_b32 v{vT+1}, 5, v{vT+1}")
    A.i(f"v_and_b32 v{vT}, 1, v{vT}")
    A.i(f"v_add_u32 v{vT}, v{vT}, v{vT+1}")
    A.i(f"s_lshl_b32 {s(sT0)}, {s(sWAVE)}, 3")
    A.i(f"v_add_u32 v{vT}, {s(sT0)}, v{vT}")
    XS = 1408 if "xstride" in DBG else 1280
    if "xstride" in DBG: srd(A, rX, pWS, WS_USED)
    A.i(f"s_movk_i32 {s(sT1)}, {XS}")
    A.i(f"v_mul_lo_u32 v{vT}, v{vT}, {s(sT1)}")
    A.i(f"v_and_b32 v{vT+1}, 7, v{vLANE}")
    A.i(f"v_lshl_add_u32 v{vOFX}, v{vT+1}, 4, v{vT}")
    for r in range(1, 4):
        A.i(f"v_add_u32 v{vOFX+r}, {r*(2*XS-1056)}, v{vOFX}")
    A.i(f"s_lshl_b32 {s(sT0)}, {s(sWM)}, 2")
    A.i(f"s_lshl_b32 {s(sT1)}, {s(sWN)}, 3")
    A.i(f"s_add_u32 {s(sT0)}, {s(sT0)}, {s(sT1)}")
    A.i(f"v_lshlrev_b32 v{vT}, 4, v{vQ}")
    A.i(f"v_add_u32 v{vT}, {s(sT0)}, v{vT}")
    A.i(f"s_movk_i32 {s(sT1)}, 3840")
    A.i(f"v_mul_lo_u32 v{vT+1}, v{vT}, {s(sT1)}")
    A.i(f"v_lshl_add_u32 v{vOFW}, v{vJ}, 4, v{vT+1}")
    for r in range(1, 4):
        A.i(f"v_add_u32 v{vOFW+r}, {r*(3840-1056)}, v{vOFW}")
    A.i(f"s_movk_i32 {s(sT1)}, 3456")
    A.i(f"v_mul_lo_u32 v{vT+1}, v{vT}, {s(sT1)}")
    A.i(f"v_lshl_add_u32 v{vOFG}, v{vJ}, 4, v{vT+1}")
    for r in range(1, 4):
        A.i(f"v_add_u32 v{vOFG+r}, {r*(3456-1056)}, v{vOFG}")
    A.i(f"s_movk_i32 {s(sT1)}, 1056")
    A.i(f"v_mul_lo_u32 v{vT}, v{vJ}, {s(sT1)}")
    A.i(f"v_lshl_add_u32 v{vT}, v{vQ}, 4, v{vT}")
    A.i(f"s_lshl_b32 {s(sT0)}, {s(sWM)}, 9")
    A.i(f"s_lshl_b32 {s(sT2)}, {s(sWN)}, 8")
    A.i(f"s_add_u32 {s(sT3)}, {s(sT0)}, {s(sT2)}")
    A.i(f"v_add_u32 v{vXLO}, {s(sT3)}, v{vT}")
    A.i(f"s_sub_u32 {s(sT3)}, {s(sT0)}, {s(sT2)}")
    A.i(f"s_add_u32 {s(sT3)}, {s(sT3)}, 256")
    A.i(f"v_add_u32 v{vXHI}, {s(sT3)}, v{vT}")
    A.i(f"v_lshrrev_b32 v{vT}, 2, v{vJ}")
    A.i(f"v_and_b32 v{vT+1}, 1, v{vQ}")
    A.i(f"v_lshl_add_u32 v{vT}, v{vT+1}, 2, v{vT}")
    A.i(f"v_mul_lo_u32 v{vT}, v{vT}, {s(sT1)}")
    A.i(f"v_lshrrev_b32 v{vT+1}, 1, v{vQ}")
    A.i(f"v_lshl_add_u32 v{vT}, v{vT+1}, 8, v{vT}")
    A.i(f"v_and_b32 v{vT+1}, 3, v{vJ}")
    A.i(f"v_lshl_add_u32 v{vT+2}, v{vT+1}, 3, v{vT}")
    A.i(f"s_lshl_b32 {s(sT0)}, {s(sWN)}, 7")
    A.i(f"s_add_u32 {s(sT0)}, {s(sT0)}, {REG}")
    A.i(f"s_lshl_b32 {s(sT2)}, {s(sWM)}, 6")
    A.i(f"s_add_u32 {s(sT3)}, {s(sT0)}, {s(sT2)}")
    A.i(f"v_add_u32 v{vWLO}, {s(sT3)}, v{vT+2}")
    A.i(f"s_sub_u32 {s(sT3)}, {s(sT0)}, {s(sT2)}")
    A.i(f"s_add_u32 {s(sT3)}, {s(sT3)}, 64")
    A.i(f"v_add_u32 v{vWHI}, {s(sT3)}, v{vT+2}")
    A.i(f"v_mov_b32 v{vONES}, 0x3f803f80")
    for r in range(1, 4):
        A.i(f"v_mov_b32 v{vONES+r}, 0x3f803f80")
    A.i(f"s_mul_i32 {s(sA)}, {s(sRT)}, {128*XS}")
    A.i(f"s_lshl_b32 {s(sB)}, {s(sCT)}, 8")
    A.i(f"s_mul_i32 {s(sC)}, {s(sCT)}, 224")
    A.i(f"s_mul_i32 {s(sD)}, {s(sWAVE)}, {4*1056}")

    def issue_dma(st):
        slot = st % 4
        lst = st % 10
        ops = []
        ops.append(lambda: A.i(f"s_add_u32 {s(sE)}, {s(sROT)}, {lst}"))
        ops.append(lambda: A.i(f"s_cmp_ge_u32 {s(sE)}, 10"))
        ops.append(lambda: A.i(f"s_cselect_b32 {s(sF_)}, 10, 0"))
        ops.append(lambda: A.i(f"s_sub_u32 {s(sE)}, {s(sE)}, {s(sF_)}"))
        if st < 10:
            ops.append(lambda: A.i(f"s_lshl_b32 {s(sSOX)}, {s(sE)}, 7"))
            ops.append(lambda: A.i(f"s_add_u32 {s(sSOX)}, {s(sSOX)}, {s(sA)}"))
            ops.append(lambda: A.i(f"s_add_u32 m0, {s(sD)}, {slot*SLOT}"))
            ops.append(lambda: A.i(f"s_mul_i32 {s(sSOW)}, {s(sE)}, {64*3840}"))
            for r in range(4):
                ops.append(lambda r=r: A.vm(f"buffer_load_dwordx4 v{vOFX+r}, {s(rX,4)}, {s(sSOX)} offen offset:{r*1056} lds", ("dma", st)))
            ops.append(lambda: A.i(f"s_add_u32 m0, {s(sD)}, {slot*SLOT+REG}"))
            ops.append(lambda: A.i(f"s_add_u32 {s(sSOW)}, {s(sSOW)}, {s(sB)}"))
            for r in range(4):
                ops.append(lambda r=r: A.vm(f"buffer_load_dwordx4 v{vOFW+r}, {s(rWQKV,4)}, {s(sSOW)} offen offset:{r*1056} lds", ("dma", st)))
        else:
            ops.append(lambda: A.i(f"s_mul_i32 {s(sSOW)}, {s(sE)}, {64*3456}"))
            ops.append(lambda: A.i(f"s_add_u32 m0, {s(sD)}, {slot*SLOT}"))
            ops.append(lambda: A.i(f"s_add_u32 {s(sSOW)}, {s(sSOW)}, {s(sC)}"))
            for r in range(4):
                ops.append(lambda r=r: A.vm(f"buffer_load_dwordx4 v{vOFG+r}, {s(rWG,4)}, {s(sSOW)} offen offset:{r*1056} lds", ("dma", st)))
            ops.append(lambda: A.i(f"s_add_u32 m0, {s(sD)}, {slot*SLOT+REG+16}"))
            ops.append(lambda: A.i(f"s_nop 0"))
            for r in range(4):
                ops.append(lambda r=r: A.vm(f"buffer_load_dwordx4 v{vOFG+r}, {s(rWU,4)}, {s(sSOW)} offen offset:{r*1056} lds", ("dma", st)))
        return ops

    TOUCH = "touch" in DBG
    def issue_touch(d):
        ops = []
        if d < 5:
            ops.append(lambda: A.i(f"s_mov_b32 m0, {TSCR}"))
            ops.append(lambda: A.i(f"s_movk_i32 {s(sTS)}, {d*256}"))
            ops.append(lambda: A.vm(f"buffer_load_dword v{vTXo}, {s(rX,4)}, {s(sTS)} offen lds", ("t", d)))
            ops.append(lambda: A.i(f"s_mov_b32 {s(sTS)}, {d*128*3840}"))
            ops.append(lambda: A.vm(f"buffer_load_dword v{vTWo}, {s(rWQKV,4)}, {s(sTS)} offen lds", ("t", d)))
        else:
            ops.append(lambda: A.i(f"s_mov_b32 m0, {TSCR}"))
            ops.append(lambda: A.i(f"s_mov_b32 {s(sTS)}, {(d-5)*128*3456}"))
            ops.append(lambda: A.vm(f"buffer_load_dword v{vTGo}, {s(rWG,4)}, {s(sTS)} offen lds", ("t", d)))
            ops.append(lambda: A.vm(f"buffer_load_dword v{vTGo}, {s(rWU,4)}, {s(sTS)} offen lds", ("t", d)))
        return ops
    if TOUCH:
        A.i(f"s_lshl_b32 {s(sT0)}, {s(sWAVE)}, 4")
        A.i(f"v_add_u32 v{vT}, {s(sT0)}, v{vJ}")
        A.i(f"v_and_b32 v{vT+1}, 31, v{vT}")
        A.i(f"s_and_b32 {s(sT0)}, {s(sXCD)}, 1")
        A.i(f"s_lshl_b32 {s(sT0)}, {s(sT0)}, 10")
        A.i(f"s_lshl_b32 {s(sT1)}, {s(sIDX)}, 5")
        A.i(f"s_add_u32 {s(sT0)}, {s(sT0)}, {s(sT1)}")
        A.i(f"v_add_u32 v{vT+1}, {s(sT0)}, v{vT+1}")
        A.i(f"s_movk_i32 {s(sT1)}, 1280")
        A.i(f"v_mul_lo_u32 v{vT+1}, v{vT+1}, {s(sT1)}")
        A.i(f"v_lshrrev_b32 v{vT}, 5, v{vT}")
        A.i(f"v_lshl_add_u32 v{vTXo}, v{vT}, 7, v{vT+1}")
        A.i(f"s_lshl_b32 {s(sT0)}, {s(sWAVE)}, 3")
        A.i(f"v_and_b32 v{vT}, 7, v{vLANE}")
        A.i(f"v_add_u32 v{vT+1}, {s(sT0)}, v{vT}")
        A.i(f"v_lshrrev_b32 v{vT+2}, 4, v{vT+1}")
        A.i(f"v_lshlrev_b32 v{vT+2}, 6, v{vT+2}")
        A.i(f"v_bfe_u32 v{vT+1}, v{vT+1}, 3, 1")
        A.i(f"v_add_u32 v{vT+2}, v{vT+2}, v{vT+1}")
        A.i(f"s_lshl_b32 {s(sT0)}, {s(sIDX)}, 1")
        A.i(f"v_add_u32 v{vT+2}, {s(sT0)}, v{vT+2}")
        A.i(f"s_movk_i32 {s(sT1)}, 3840")
        A.i(f"v_mul_lo_u32 v{vT+1}, v{vT+2}, {s(sT1)}")
        A.i(f"v_lshl_add_u32 v{vT+1}, v{vT}, 7, v{vT+1}")
        A.i(f"s_lshr_b32 {s(sT0)}, {s(sXCD)}, 1")
        A.i(f"s_lshl_b32 {s(sT1)}, {s(sT0)}, 10")
        A.i(f"v_add_u32 v{vTWo}, {s(sT1)}, v{vT+1}")
        A.i(f"s_movk_i32 {s(sT1)}, 3456")
        A.i(f"v_mul_lo_u32 v{vT+1}, v{vT+2}, {s(sT1)}")
        A.i(f"v_lshl_add_u32 v{vT+1}, v{vT}, 7, v{vT+1}")
        A.i(f"s_mul_i32 {s(sT1)}, {s(sT0)}, 896")
        A.i(f"v_add_u32 v{vTGo}, {s(sT1)}, v{vT+1}")
        for st in range(4):
            for op in issue_dma(st): op()
        for d in range(2, 5):
            for op in issue_touch(d): op()
    else:
        for st in range(4):
            for op in issue_dma(st): op()

    bundles = []
    groups = []
    ring = [0]
    def wring():
        r = vWR + (ring[0] % NRING) * 4
        ring[0] += 1
        return r
    for st in range(10):
        for ks in range(2):
            T = 2 * st + ks
            xb = []
            for rb in range(4):
                base = vXLOc if rb < 2 else vXHIc
                xb.append(f"ds_read_b128 {xfrag(T, rb)}, v{base} offset:{(rb%2)*128 + ks*64}")
            bundles.append((st, ("x", T), xb))
            for c in range(4):
                r = wring()
                base = vWLOc if c < 2 else vWHIc
                ins = [f"ds_read_b64_tr_b16 {v(r,2)}, v{base} offset:{ks*512 + (c%2)*32}",
                       f"ds_read_b64_tr_b16 {v(r+2,2)}, v{base} offset:{8448 + ks*512 + (c%2)*32}"]
                bundles.append((st, ("w", T, c), ins))
                m = []
                first = (T == 0)
                for rb in range(4):
                    d = v(vACC + (c*4+rb)*4, 4)
                    m.append(f"v_mfma_f32_16x16x32_bf16 {d}, {v(r,4)}, {xfrag(T, rb)}, {'0' if first else d}")
                if c < 2:
                    d = v(vCS1 + c*4, 4)
                    m.append(f"v_mfma_f32_16x16x32_bf16 {d}, {v(r,4)}, {v(vONES,4)}, {'0' if first else d}")
                else:
                    rb = c - 2
                    d = v(vST + rb*8, 4)
                    m.append(f"v_mfma_f32_16x16x32_bf16 {d}, {v(vONES,4)}, {xfrag(T, rb)}, {'0' if first else d}")
                    d = v(vST + rb*8 + 4, 4)
                    m.append(f"v_mfma_f32_16x16x32_bf16 {d}, {xfrag(T, rb)}, {xfrag(T, rb)}, {'0' if first else d}")
                groups.append((st, [("x", T), ("w", T, c)], m))
    np1 = len(groups)
    for st in range(10, 20):
        for ks in range(2):
            T = 2 * (st - 10) + ks
            for b in range(7):
                r = wring()
                base = vWLOc if b < 4 else vWHIc
                bo = (b if b < 4 else b - 4) * 16
                ins = [f"ds_read_b64_tr_b16 {v(r,2)}, v{base} offset:{ks*512 + bo}",
                       f"ds_read_b64_tr_b16 {v(r+2,2)}, v{base} offset:{8448 + ks*512 + bo}"]
                bundles.append((st, ("g", T, b), ins))
                m = []
                first = (T == 0)
                for rb in range(4):
                    d = v(vACC + (b*4+rb)*4, 4)
                    m.append(f"v_mfma_f32_16x16x32_bf16 {d}, {v(r,4)}, {xfrag(T, rb)}, {'0' if first else d}")
                if b < 4:
                    d = v(vCS2 + b*4, 4)
                    m.append(f"v_mfma_f32_16x16x32_bf16 {d}, {v(r,4)}, {v(vONES,4)}, {'0' if first else d}")
                groups.append((st, [("g", T, b)], m))

    state = dict(bi=0, cur_stage=-1, pend=[])
    LOOK = 4

    def open_stage(st):
        A.c(f"--- open stage {st}")
        A.wait_vm(("dma", st))
        A.wait_lg(None)
        if "fine" in DBG and st in (0, 3, 6, 9): stamp(A, {0: 2, 3: 3, 6: 4, 9: 5}[st])
        if "nobar" not in DBG: A.i("s_barrier")
        slot = st % 4
        if st == 10:
            A.i(f"s_movk_i32 {s(sT1)}, 1056")
            A.i(f"v_lshrrev_b32 v{vT}, 2, v{vJ}")
            A.i(f"v_and_b32 v{vT+1}, 1, v{vQ}")
            A.i(f"v_lshl_add_u32 v{vT}, v{vT+1}, 2, v{vT}")
            A.i(f"v_mul_lo_u32 v{vT}, v{vT}, {s(sT1)}")
            A.i(f"v_lshrrev_b32 v{vT+1}, 1, v{vQ}")
            A.i(f"v_lshl_add_u32 v{vT}, v{vT+1}, 8, v{vT}")
            A.i(f"v_and_b32 v{vT+1}, 1, v{vJ}")
            A.i(f"v_lshl_add_u32 v{vT}, v{vT+1}, 3, v{vT}")
            A.i(f"v_bfe_u32 v{vT+1}, v{vJ}, 1, 1")
            A.i(f"s_movk_i32 {s(sT1)}, {REG+16}")
            A.i(f"v_mad_u32_u24 v{vT}, v{vT+1}, {s(sT1)}, v{vT}")
            A.i(f"s_mul_i32 {s(sT0)}, {s(sWN)}, {7*16}")
            A.i(f"s_mul_i32 {s(sT2)}, {s(sWM)}, {3*16}")
            A.i(f"s_add_u32 {s(sT3)}, {s(sT0)}, {s(sT2)}")
            A.i(f"v_add_u32 v{vWLO}, {s(sT3)}, v{vT}")
            A.i(f"s_lshl_b32 {s(sT2)}, {s(sWM)}, 6")
            A.i(f"s_sub_u32 {s(sT3)}, {s(sT0)}, {s(sT2)}")
            A.i(f"s_add_u32 {s(sT3)}, {s(sT3)}, 64")
            A.i(f"v_add_u32 v{vWHI}, {s(sT3)}, v{vT}")
        if st < 10:
            A.i(f"v_add_u32 v{vXLOc}, {slot*SLOT}, v{vXLO}")
            A.i(f"v_add_u32 v{vXHIc}, {slot*SLOT}, v{vXHI}")
        A.i(f"v_add_u32 v{vWLOc}, {slot*SLOT}, v{vWLO}")
        A.i(f"v_add_u32 v{vWHIc}, {slot*SLOT}, v{vWHI}")
        state["cur_stage"] = st
        if st == 6 and REPACK:
            import p45
            p45.repack_issue(A, RSCR, vT, 96, 97)
        if HOOK.get("open_stage"): HOOK["open_stage"](st, state)
        if st >= 1 and st + 3 < 20 and "nodma" not in DBG:
            state["pend"] += issue_dma(st + 3)
        if TOUCH and st % 2 == 0 and st // 2 + 5 < 10:
            state["pend"] += issue_touch(st // 2 + 5)

    def wcount_ahead(gi):
        n = 0
        for k in range(state["bi"]):
            if bundles[k][1][0] in ("w", "g"): n += 1
        return n - (gi + 1)

    def issue_bundle():
        st, tag, ins = bundles[state["bi"]]
        if st != state["cur_stage"]:
            open_stage(st)
        for x in ins:
            if "nods" in DBG: continue
            if "nox" in DBG and tag[0] == "x": continue
            A.ds(x, tag)
        state["bi"] += 1

    def run_groups(g0, g1, blimit):
        for gi in range(g0, g1):
            st, needs, m = groups[gi]
            while not all(any(bundles[k][1] == t for k in range(state["bi"])) for t in needs):
                issue_bundle()
            for t in needs: A.wait_lg(t)
            for mi, ins in enumerate(m):
                if "nomfma" not in DBG: A.i(ins)
                if mi == 0:
                    while state["bi"] < blimit and wcount_ahead(gi) < LOOK:
                        if bundles[state["bi"]][0] != state["cur_stage"]:
                            break
                        issue_bundle()
                elif mi == 3:
                    if state["bi"] < blimit and wcount_ahead(gi) < LOOK and bundles[state["bi"]][0] != state["cur_stage"]:
                        issue_bundle()
                        while state["bi"] < blimit and wcount_ahead(gi) < LOOK and bundles[state["bi"]][0] == state["cur_stage"]:
                            issue_bundle()
                else:
                    for _ in range(2):
                        if state["pend"]:
                            state["pend"].pop(0)()
    nb1 = sum(1 for b in bundles if b[0] < 10)
    run_groups(0, np1, nb1)
    while state["pend"]: state["pend"].pop(0)()

    A.c("==== P1 epilogue ====")
    if 'fine' not in DBG: stamp(A, 1)
    A.nop(10)
    for rb in range(2):
        d1 = vST + rb*8; d2 = d1 + 4
        t = vT + rb*2
        A.i(f"v_cndmask_b32 v{d2}, v{d2}, v{d2+1}, {s(sM1,2)}")
        A.i(f"v_cndmask_b32 v{d2}, v{d2}, v{d2+2}, {s(sM2,2)}")
        A.i(f"v_cndmask_b32 v{d2}, v{d2}, v{d2+3}, {s(sM3,2)}")
        A.i(f"v_mul_f32 v{t}, {1.0/640}, v{d1}")
        A.i(f"v_mul_f32 v{d2}, {1.0/640}, v{d2}")
        A.i(f"v_fma_f32 v{d2}, -v{t}, v{t}, v{d2}")
        A.i(f"v_add_f32 v{d2}, 0x3727c5ac, v{d2}")
        A.i(f"v_rsq_f32 v{t+1}, v{d2}")
    A.i(f"s_lshl_b32 {s(sT0)}, {s(sWM)}, 9")
    A.i(f"s_lshl_b32 {s(sT2)}, {s(sWN)}, 8")
    A.i(f"s_add_u32 {s(sT3)}, {s(sT0)}, {s(sT2)}")
    A.i(f"s_add_u32 {s(sT3)}, {s(sT3)}, {STATS}")
    A.i(f"v_lshlrev_b32 v{vST}, 3, v{vJ}")
    A.i(f"v_add_u32 v{vST+1}, {s(sT3)}, v{vST}")
    A.i(f"s_sub_u32 {s(sT3)}, {s(sT0)}, {s(sT2)}")
    A.i(f"s_add_u32 {s(sT3)}, {s(sT3)}, {STATS+256}")
    A.i(f"v_add_u32 v{vST+2}, {s(sT3)}, v{vST}")
    A.i(f"s_mov_b64 exec, {s(sDIAG,2)}")
    A.ds(f"ds_write_b64 v{vST+1}, {v(vT,2)}")
    A.ds(f"ds_write_b64 v{vST+1}, {v(vT+2,2)} offset:128")
    A.i(f"s_mov_b64 exec, -1")
    A.i(f"s_lshl_b32 {s(sT0)}, {s(sWN)}, 8")
    A.i(f"s_lshl_b32 {s(sT2)}, {s(sWM)}, 7")
    A.i(f"s_add_u32 {s(sT3)}, {s(sT0)}, {s(sT2)}")
    A.i(f"s_add_u32 {s(sT3)}, {s(sT3)}, {CS1}")
    A.i(f"v_lshlrev_b32 v{vST}, 4, v{vQ}")
    A.i(f"v_add_u32 v{vST+3}, {s(sT3)}, v{vST}")
    A.i(f"s_sub_u32 {s(sT3)}, {s(sT0)}, {s(sT2)}")
    A.i(f"s_add_u32 {s(sT3)}, {s(sT3)}, {CS1+128}")
    A.i(f"v_add_u32 v{vST+4}, {s(sT3)}, v{vST}")
    A.i(f"s_mov_b64 exec, {s(sJ0,2)}")
    A.ds(f"ds_write_b128 v{vST+3}, {v(vCS1,4)}")
    A.ds(f"ds_write_b128 v{vST+3}, {v(vCS1+4,4)} offset:64")
    A.i(f"s_mov_b64 exec, -1")
    A.wait_lg(None)
    A.i("s_barrier")
    for rb in range(4):
        base = vST+1 if rb < 2 else vST+2
        A.ds(f"ds_read_b64 {v(vST+8+rb*2,2)}, v{base} offset:{(rb%2)*128}")
    for c in range(4):
        base = vST+3 if c < 2 else vST+4
        A.ds(f"ds_read_b128 {v(vCS1+c*4,4)}, v{base} offset:{(c%2)*64}")
    A.wait_lg(None)
    for rb in range(4):
        A.i(f"v_mov_b32 v{vMEAN+rb}, v{vST+8+rb*2}")
        A.i(f"v_mov_b32 v{vRSTD+rb}, v{vST+9+rb*2}")
    if REPACK:
        import p45
        p45.repack_finish(A, RSCR, vT, vWR, 97)
    cs = DH ** -0.5 * math.log2(math.e)
    import struct
    csbits = struct.unpack("<I", struct.pack("<f", cs))[0]
    A.i(f"s_cmp_lt_u32 {s(sCT)}, 5")
    A.i(f"s_cselect_b32 {s(sT0)}, {csbits:#x}, 1.0")
    for rb in range(4):
        A.i(f"v_mul_f32 v{vST+8+rb}, {s(sT0)}, v{vRSTD+rb}")
    A.i(f"v_lshlrev_b32 v{vST}, 14, v{vQ}")
    A.i(f"v_lshl_add_u32 v{vST}, v{vJ}, 4, v{vST}")
    A.i(f"s_lshl_b32 {s(sT0)}, {s(sCT)}, 19")
    A.i(f"s_lshl_b32 {s(sT1)}, {s(sWN)}, 18")
    A.i(f"s_add_u32 {s(sT0)}, {s(sT0)}, {s(sT1)}")
    A.i(f"s_lshl_b32 {s(sT1)}, {s(sRT)}, 10")
    A.i(f"s_add_u32 {s(sT0)}, {s(sT0)}, {s(sT1)}")
    A.i(f"s_lshl_b32 {s(sT1)}, {s(sWM)}, 9")
    A.i(f"s_add_u32 {s(sT0)}, {s(sT0)}, {s(sT1)}")
    if QKV_OFF: A.i(f"s_add_u32 {s(sT0)}, {s(sT0)}, {QKV_OFF}")
    A.i(f"s_cmp_ge_u32 {s(sCT)}, 15")
    A.i(f"s_cselect_b32 {s(sT0)}, 0x40000000, {s(sT0)}")
    for c in range(4):
        for pi in range(2):
            o = vST + 16 + ((c*2+pi) % 2) * 4
            o = vWR + ((c*2+pi) % 4) * 4
            for h in range(2):
                rb = 2*pi + h
                ac = vACC + (c*4+rb)*4
                for r in range(4):
                    A.i(f"v_fma_f32 v{ac+r}, -v{vMEAN+rb}, v{vCS1+c*4+r}, v{ac+r}")
                for r in range(4):
                    A.i(f"v_mul_f32 v{ac+r}, v{vST+8+rb}, v{ac+r}")
                A.i(f"v_cvt_pk_bf16_f32 v{o+2*h}, v{ac}, v{ac+1}")
                A.i(f"v_cvt_pk_bf16_f32 v{o+2*h+1}, v{ac+2}, v{ac+3}")
            A.i(f"s_lshl_b32 {s(sT1)}, {s(sWM)}, 1")
            A.i(f"s_add_u32 {s(sT1)}, {s(sT1)}, {c}")
            A.i(f"s_and_b32 {s(sT1)}, {s(sT1)}, 3")
            A.i(f"s_lshl_b32 {s(sT1)}, {s(sT1)}, 16")
            A.i(f"s_add_u32 {s(sT2)}, {s(sWN)}, {pi}")
            A.i(f"s_and_b32 {s(sT2)}, {s(sT2)}, 1")
            A.i(f"s_lshl_b32 {s(sT2)}, {s(sT2)}, 8")
            A.i(f"s_add_u32 {s(sT1)}, {s(sT1)}, {s(sT2)}")
            A.i(f"s_add_u32 {s(sT1)}, {s(sT1)}, {s(sT0)}")
            A.vm(f"buffer_store_dwordx4 {v(o,4)}, v{vST}, {s(rWS,4)}, {s(sT1)} offen sc1", "qkvst")
    return dict(run_groups=run_groups, groups=groups, np1=np1, bundles=bundles, state=state)

def phase2_rest(A, ctx):
    run_groups, groups, np1, bundles, state = ctx["run_groups"], ctx["groups"], ctx["np1"], ctx["bundles"], ctx["state"]
    if 'fine' not in DBG: stamp(A, 2)
    run_groups(np1, len(groups), len(bundles))
    while state["pend"]: state["pend"].pop(0)()
    A.c("==== P2 epilogue ====")
    if 'fine' not in DBG: stamp(A, 3)
    A.nop(10)
    A.i(f"s_mul_i32 {s(sT0)}, {s(sWN)}, {7*64}")
    A.i(f"s_add_u32 {s(sT0)}, {s(sT0)}, {CS2}")
    A.i(f"s_mul_i32 {s(sT2)}, {s(sWM)}, {3*64}")
    A.i(f"s_add_u32 {s(sT3)}, {s(sT0)}, {s(sT2)}")
    A.i(f"v_lshlrev_b32 v{vT}, 4, v{vQ}")
    A.i(f"v_add_u32 v{vT+1}, {s(sT3)}, v{vT}")
    A.i(f"s_lshl_b32 {s(sT2)}, {s(sWM)}, 8")
    A.i(f"s_sub_u32 {s(sT3)}, {s(sT0)}, {s(sT2)}")
    A.i(f"s_add_u32 {s(sT3)}, {s(sT3)}, 256")
    A.i(f"v_add_u32 v{vT+2}, {s(sT3)}, v{vT}")
    A.i(f"s_mov_b64 exec, {s(sJ0,2)}")
    for b in range(4):
        A.ds(f"ds_write_b128 v{vT+1}, {v(vCS2+b*4,4)} offset:{b*64}")
    A.i(f"s_mov_b64 exec, -1")
    A.wait_lg(None)
    A.i("s_barrier")
    def csreg(b): return vCS2 + b*4 if b < 4 else vWR + (b-4)*4
    for b in range(7):
        base = vT+1 if b < 4 else vT+2
        A.ds(f"ds_read_b128 {v(csreg(b),4)}, v{base} offset:{(b if b < 4 else b-4)*64}")
    A.i(f"v_cmp_gt_u32 vcc, 32, v{vLANE}")
    A.i("s_nop 1")
    vR2 = vWR + 12
    for pi in range(2):
        A.i(f"v_cndmask_b32 v{vR2+pi}, v{vRSTD+2*pi+1}, v{vRSTD+2*pi}, vcc")
        A.i(f"v_mul_f32 v{vR2+pi}, v{vR2+pi}, v{vR2+pi}")
    vO1, vO2, vQ1, vOT = vWR+14, vWR+15, vWR+16, vWR+17
    A.i(f"v_lshrrev_b32 v{vO1}, 5, v{vLANE}")
    A.i(f"s_mov_b32 {s(sT0)}, 55296")
    A.i(f"v_mul_lo_u32 v{vO1}, v{vO1}, {s(sT0)}")
    A.i(f"v_lshl_add_u32 v{vO1}, v{vJ}, 4, v{vO1}")
    A.i(f"v_and_b32 v{vQ1}, 1, v{vQ}")
    A.i(f"v_lshl_add_u32 v{vO2}, v{vQ1}, 3, v{vO1}")
    A.i(f"v_lshl_add_u32 v{vO1}, v{vQ1}, 8, v{vO1}")
    A.i(f"s_lshl_b32 {s(sT0)}, {s(sRT)}, 3")
    A.i(f"s_lshl_b32 {s(sT1)}, {s(sWM)}, 2")
    A.i(f"s_add_u32 {s(sT0)}, {s(sT0)}, {s(sT1)}")
    A.i(f"s_mul_i32 {s(sT0)}, {s(sT0)}, 55296")
    A.i(f"s_add_u32 {s(sT0)}, {s(sT0)}, {HB_OFF}")
    A.i(f"s_mul_i32 {s(sT4)}, {s(sCT)}, 14")
    A.i(f"s_mul_i32 {s(sT1)}, {s(sWN)}, 7")
    A.i(f"s_add_u32 {s(sT4)}, {s(sT4)}, {s(sT1)}")
    A.wait_lg(None)
    vX = vWR + 18
    for pi in range(2):
        for bp in range(4):
            blks = [2*bp, 2*bp+1] if bp < 3 else [6]
            for k, b in enumerate(blks):
                ra = vACC + (b*4 + 2*pi)*4
                rb_ = vACC + (b*4 + 2*pi+1)*4
                for r in range(4):
                    A.i(f"v_fma_f32 v{ra+r}, -v{vMEAN+2*pi}, v{csreg(b)+r}, v{ra+r}")
                    A.i(f"v_fma_f32 v{rb_+r}, -v{vMEAN+2*pi+1}, v{csreg(b)+r}, v{rb_+r}")
                A.i("s_nop 1")
                for r in range(4):
                    A.i(f"v_permlane32_swap_b32 v{ra+r}, v{rb_+r}")
                A.i("s_nop 1")
                for r in range(4):
                    A.i(f"v_mul_f32 v{ra+r}, v{ra+r}, v{rb_+r}")
                for r in range(4):
                    A.i(f"v_mul_f32 v{ra+r}, v{vR2+pi}, v{ra+r}")
                A.i(f"v_cvt_pk_bf16_f32 v{vX+2*k}, v{ra}, v{ra+1}")
                A.i(f"v_cvt_pk_bf16_f32 v{vX+2*k+1}, v{ra+2}, v{ra+3}")
            b0 = blks[0]
            if b0 < 4:
                A.i(f"s_mul_i32 {s(sT1)}, {s(sWM)}, 3")
                A.i(f"s_add_u32 {s(sT1)}, {s(sT1)}, {b0}")
            else:
                A.i(f"s_lshl_b32 {s(sT1)}, {s(sWM)}, 2")
                A.i(f"s_sub_u32 {s(sT1)}, {b0}, {s(sT1)}")
            A.i(f"s_add_u32 {s(sT1)}, {s(sT1)}, {s(sT4)}")
            A.i(f"s_add_u32 {s(sT2)}, {s(sWN)}, {pi}")
            A.i(f"s_and_b32 {s(sT2)}, {s(sT2)}, 1")
            A.i(f"s_mul_i32 {s(sT2)}, {s(sT2)}, {2*55296}")
            A.i(f"s_add_u32 {s(sT2)}, {s(sT2)}, {s(sT0)}")
            A.i(f"s_lshl_b32 {s(sT3)}, {s(sT1)}, 8")
            A.i(f"s_add_u32 {s(sT2)}, {s(sT2)}, {s(sT3)}")
            if len(blks) == 2:
                A.i("s_nop 0")
                A.i(f"v_permlane16_swap_b32 v{vX}, v{vX+2}")
                A.i(f"v_permlane16_swap_b32 v{vX+1}, v{vX+3}")
                A.i(f"v_add_u32 v{vOT}, {s(sT1)}, v{vQ1}")
                A.i(f"v_cmp_gt_u32 vcc, 216, v{vOT}")
                A.i("s_nop 1")
                A.i(f"v_cndmask_b32 v{vOT}, 0x40000000, v{vO1}, vcc")
                A.vm(f"buffer_store_dwordx4 {v(vX,4)}, v{vOT}, {s(rWS,4)}, {s(sT2)} offen sc1", "hst")
            else:
                A.i(f"s_cmp_lt_u32 {s(sT1)}, 216")
                A.i(f"s_cselect_b32 {s(sT3)}, 0, 0x40000000")
                A.i(f"v_or_b32 v{vOT}, {s(sT3)}, v{vO2}")
                A.vm(f"buffer_store_dwordx2 {v(vX,2)}, v{vOT}, {s(rWS,4)}, {s(sT2)} offen sc1", "hst")
            A.nop(2)

KNAME = "parallel_sum__sliding_block__glu_gated_bilinear__prompt_kernel"
def build(which):
    import p3, p45
    A = Asm()
    names = []
    if which == "k1":
        names = ["k1_kernel"]
    elif which == "k12":
        names = ["k1_kernel", "k2_kernel"]
    elif which == "k123":
        names = ["k1_kernel", "k2_kernel", "k3_kernel"]
    elif which == "fused":
        names = [KNAME]
    for n in names:
        if n == KNAME:
            A.raw("; @launch grid=(256,1,1) block=(256,1,1) lds=163840")
        else:
            A.raw(f"; @launch kernel={n} grid=(256,1,1) block=(256,1,1) lds=163840")
    A.raw('.amdgcn_target "amdgcn-amd-amdhsa--gfx950"')
    A.raw(".text")
    if "k1_kernel" in names:
        prologue(A, "k1_kernel")
        ctx = phase12(A, ROT=not NOROT)
        phase2_rest(A, ctx)
        if 'fine' not in DBG: stamp(A, 4)
        A.wait_all()
        if 'fine' not in DBG: stamp(A, 5)
        stamp_flush(A)
        kernel_footer(A, "k1_kernel")
    if "k2_kernel" in names:
        A.vmq = []; A.lgq = []
        prologue(A, "k2_kernel")
        p3.p3_ids(A)
        for op in p3.p3_stage_kv(A, 8): op()
        p3.p3_setup(A)
        if 'fine' not in DBG: stamp(A, 1)
        p3.p3_compute(A, st2=lambda k: stamp(A, k))
        A.wait_all()
        if 'fine' not in DBG: stamp(A, 5)
        stamp_flush(A)
        kernel_footer(A, "k2_kernel")
    if "k3_kernel" in names:
        A.vmq = []; A.lgq = []
        prologue(A, "k3_kernel")
        p45.p45_setup(A)
        p45.p45(A)
        if 'fine' not in DBG: stamp(A, 4)
        A.wait_all()
        if 'fine' not in DBG: stamp(A, 5)
        stamp_flush(A)
        kernel_footer(A, "k3_kernel")
    if KNAME in names:
        SC = "sc1"
        prologue(A, KNAME)
        vPA, vPD = 4, 8
        def open_stage_hook(st, state):
            if st == 7:
                make_dbg_srd(A)
                epoch_publish(A, vT)
            if st == 10:
                epoch_issue(A, 4, 5)
            if st == 13:
                epoch_check(A, 4, 5)
                A.i("s_nop 3")
                signal(A, FQ, sRT, sCT, 4)
            if st == 16:
                p3.p3_ids(A)
                A.i(f"v_min_u32 v{vPA}, 2, v{vQ}")
                A.i(f"s_sub_u32 {s(sT0)}, {s(p3.sQB)}, 2")
                A.i(f"v_add_u32 v{vPA}, {s(sT0)}, v{vPA}")
                A.i(f"v_max_i32 v{vPA}, 0, v{vPA}")
                A.i(f"v_lshlrev_b32 v{vPA}, 8, v{vPA}")
                A.i(f"v_lshl_add_u32 v{vPA}, v{vJ}, 4, v{vPA}")
                if FQ: A.i(f"v_add_u32 v{vPA}, {FQ}, v{vPA}")
                poll_issue(A, vPA, vPD, "pq")
            if st == 18:
                poll_check(A, vPA, vPD, "pq")
                state["pend"] += p3.p3_stage_kv(A, 5, SC)
        HOOK["open_stage"] = open_stage_hook
        ctx = phase12(A, ROT=not NOROT)
        phase2_rest(A, ctx)
        if 'fine' not in DBG: stamp(A, 4)
        p45.p45_setup(A)
        p3.p3_setup(A, SC)
        vW1, vWD, vH1, vHD = 245, 208, 246, 248
        A.i(f"v_lshlrev_b32 v{vW1}, 4, v{vLANE}")
        poll_issue(A, vW1, vWD, "pw", n=4)
        A.i(f"s_lshl_b32 {s(sT0)}, {s(sRH)}, 8")
        A.i(f"s_add_u32 {s(sT0)}, {s(sT0)}, {FH}")
        A.i(f"v_lshlrev_b32 v{vH1}, 4, v{vJ}")
        A.i(f"v_add_u32 v{vH1}, {s(sT0)}, v{vH1}")
        def after_staged():
            signal(A, FH, sRT, sCT, 252)
        side = []
        side.append(lambda: poll_check(A, vW1, vWD, "pw", n=4))
        for n in range(3):
            side += p45.as_closures(A, p45.loads(n, "w", SC))
        side.append(lambda: poll_issue(A, vH1, vHD, "ph"))
        NPRE_A = 3
        late = []
        late.append(lambda: poll_check(A, vH1, vHD, "ph"))
        for n in range(NPRE_A):
            late += p45.as_closures(A, p45.loads(n, "a", SC))
        pad = [lambda: None] * max(0, 34 - len(side))
        p3.p3_compute(A, st_flags=SC, after_staged=after_staged, side=side + pad + late)
        if 'fine' not in DBG: stamp(A, 5)
        vO1 = 246
        A.i(f"s_lshl_b32 {s(sT0)}, {s(sRH)}, 8")
        A.i(f"s_add_u32 {s(sT0)}, {s(sT0)}, {FO}")
        A.i(f"v_lshlrev_b32 v{vO1}, 4, v{vJ}")
        A.i(f"v_add_u32 v{vO1}, {s(sT0)}, v{vO1}")
        def after_first():
            signal(A, FO, p3.sQB, p3.sHP, 252)
        def wait_o():
            poll_check(A, vO1, vHD, "po")
        p45.p45(A, done_w=3, done_a=NPRE_A, wait_o=wait_o, sc1=SC, after_first=after_first,
                at_step={6: lambda: poll_issue(A, vO1, vHD, "po")})
        A.wait_all()
        stamp_flush(A)
        kernel_footer(A, KNAME)
    A.raw('.section .rodata,"a"')
    for n in names:
        A.raw(descriptor(n))
    return A

if __name__ == "__main__":
    if len(sys.argv) > 3 and "stamps" in sys.argv[3:]: STAMPS = True
    if "norot" in sys.argv[3:]: NOROT = True
    for x in sys.argv[3:]:
        if x in ("nodma", "nods", "nox", "nobar", "nomfma", "touch", "xstride", "fine"): DBG.add(x)
    A = build(sys.argv[1])
    open(sys.argv[2], "w").write(A.text())
    print("instructions:", A.ninstr)
```

```python
import math, struct
from asmlib import *
from gen_common import *

SLOT = 33792
REG = 16896
MISC = 4 * SLOT
STATS = MISC
CS1 = MISC + 1024
CS2 = MISC + 1536
TSCR = MISC + 4096
RSCR = MISC + 8192

vOFR = 4
vOFG = 12
vXLO, vXHI, vXLOc, vXHIc = 16, 17, 18, 19
vWLO, vWHI, vWLOc, vWHIc = 20, 21, 22, 23
vMEAN, vRSTD = 24, 28
vT = 32
vONES = 36
vWR = 40
NRING = 6
vACC = 64
vST = 128
vCS1 = 144
vCS2 = 176
vXF = 192
rROLE = 92
sRO = 80
sRS, sRM, sCUR, sG = 84, 85, 86, 87
sTS = 91

FINE = {}
def xfrag(T, rb):
    n = T * 4 + rb
    return a(n * 4, 4) if n < 64 else v(vXF + (n - 64) * 4, 4)

def setup(A):
    A.c("==== phase 1/2 setup ====")
    A.i(f"s_and_b32 {s(sT0)}, {s(sXCD)}, 1")
    A.i(f"s_lshl_b32 {s(sT0)}, {s(sT0)}, 3")
    A.i(f"s_and_b32 {s(sT1)}, {s(sIDX)}, 7")
    A.i(f"s_add_u32 {s(sRT)}, {s(sT0)}, {s(sT1)}")
    A.i(f"s_lshr_b32 {s(sT0)}, {s(sXCD)}, 1")
    A.i(f"s_lshl_b32 {s(sT0)}, {s(sT0)}, 2")
    A.i(f"s_lshr_b32 {s(sT2)}, {s(sIDX)}, 3")
    A.i(f"s_add_u32 {s(sCT)}, {s(sT0)}, {s(sT2)}")
    A.i(f"s_lshr_b32 {s(sWM)}, {s(sWAVE)}, 1")
    A.i(f"s_and_b32 {s(sWN)}, {s(sWAVE)}, 1")

def setup_loader(A):
    A.i(f"s_cmp_eq_u32 {s(sWAVE)}, 0")
    for k in range(3):
        A.i(f"s_cselect_b32 {s(rROLE+k)}, {s(rX+k)}, {s(rWQKV+k)}")
    A.i(f"s_mov_b32 {s(rROLE+3)}, 0x00020000")
    for w in range(4):
        A.i(f"s_mov_b32 {s(sT0)}, {w*8*1280}")
        A.i(f"s_cselect_b32 {s(sRO+w)}, {s(sT0)}, {(4*(w>>1) + 8*(w&1))*3840}")
    A.i(f"s_movk_i32 {s(sT0)}, 128")
    A.i(f"s_cselect_b32 {s(sRS)}, {s(sT0)}, {64*3840}")
    A.i(f"s_cselect_b32 {s(sRM)}, 0, {REG}")
    A.i(f"s_mul_i32 {s(sT0)}, {s(sRT)}, {128*1280}")
    A.i(f"s_lshl_b32 {s(sT1)}, {s(sCT)}, 8")
    A.i(f"s_cmp_eq_u32 {s(sWAVE)}, 0")
    A.i(f"s_cselect_b32 {s(sCUR)}, {s(sT0)}, {s(sT1)}")
    A.i(f"v_lshrrev_b32 v{vT}, 3, v{vLANE}")
    A.i(f"v_lshrrev_b32 v{vT+1}, 1, v{vT}")
    A.i(f"v_lshlrev_b32 v{vT+1}, 5, v{vT+1}")
    A.i(f"v_and_b32 v{vT}, 1, v{vT}")
    A.i(f"v_add_u32 v{vT}, v{vT}, v{vT+1}")
    A.i(f"v_mul_u32_u24 v{vT}, 1280, v{vT}")
    A.i(f"v_and_b32 v{vT+1}, 7, v{vLANE}")
    A.i(f"v_lshl_add_u32 v{vT}, v{vT+1}, 4, v{vT}")
    A.i(f"v_lshlrev_b32 v{vT+1}, 4, v{vQ}")
    A.i(f"v_mul_u32_u24 v{vT+2}, 3840, v{vT+1}")
    A.i(f"v_lshl_add_u32 v{vT+2}, v{vJ}, 4, v{vT+2}")
    A.i(f"s_cselect_b64 vcc, -1, 0")
    A.i(f"s_cselect_b32 {s(sT0)}, {2560-1056}, {3840-1056}" if False else f"s_movk_i32 {s(sT0)}, {2560-1056}")
    A.i(f"s_cselect_b32 {s(sT0)}, {s(sT0)}, {3840-1056}")
    A.i(f"v_cndmask_b32 v{vOFR}, v{vT+2}, v{vT}, vcc")
    for r in range(1, 4):
        A.i(f"v_add_u32 v{vOFR+r}, {s(sT0)}, v{vOFR+r-1}")
    A.i(f"v_mul_u32_u24 v{vT+2}, 3456, v{vT+1}")
    A.i(f"v_lshl_add_u32 v{vOFG}, v{vJ}, 4, v{vT+2}")
    for r in range(1, 4):
        A.i(f"v_add_u32 v{vOFG+r}, {3456-1056}, v{vOFG+r-1}")

def switch_loader_p2(A):
    A.i(f"s_cmp_eq_u32 {s(sWAVE)}, 0")
    for k in range(3):
        A.i(f"s_cselect_b32 {s(rROLE+k)}, {s(rWG+k)}, {s(rWU+k)}")
    A.i(f"s_mov_b32 {s(rROLE+3)}, 0x00020000")
    A.i(f"s_cselect_b32 {s(sRM)}, 0, {REG+16}")
    for w in range(4):
        A.i(f"s_mov_b32 {s(sRO+w)}, {(4*(w>>1) + 8*(w&1))*3456}")
    A.i(f"s_mov_b32 {s(sRS)}, {64*3456}")
    A.i(f"s_mul_i32 {s(sCUR)}, {s(sCT)}, 224")

def dma_ops(A, st):
    slot = st % 4
    vo = vOFR if st < 10 else vOFG
    ops = []
    if st == 10: ops.append(lambda: switch_loader_p2(A))
    for w in range(4):
        ops.append(lambda w=w: A.i(f"s_add_u32 {s(sG)}, {s(sCUR)}, {s(sRO+w)}"))
        ops.append(lambda w=w: A.i(f"s_add_u32 m0, {s(sRM)}, {slot*SLOT + w*4224}"))
        ops.append(lambda: A.i("s_nop 0"))
        for r in range(4):
            ops.append(lambda r=r: A.vm(f"buffer_load_dwordx4 v{vo+r}, {s(rROLE,4)}, {s(sG)} offen offset:{r*1056} lds", ("dma", st)))
    ops.append(lambda: A.i(f"s_add_u32 {s(sCUR)}, {s(sCUR)}, {s(sRS)}"))
    return ops

def setup_reads(A):
    A.i(f"s_movk_i32 {s(sT1)}, 1056")
    A.i(f"v_mul_lo_u32 v{vT}, v{vJ}, {s(sT1)}")
    A.i(f"v_lshl_add_u32 v{vT}, v{vQ}, 4, v{vT}")
    A.i(f"s_lshl_b32 {s(sT0)}, {s(sWM)}, 9")
    A.i(f"s_lshl_b32 {s(sT2)}, {s(sWN)}, 8")
    A.i(f"s_add_u32 {s(sT3)}, {s(sT0)}, {s(sT2)}")
    A.i(f"v_add_u32 v{vXLO}, {s(sT3)}, v{vT}")
    A.i(f"s_sub_u32 {s(sT3)}, {s(sT0)}, {s(sT2)}")
    A.i(f"s_add_u32 {s(sT3)}, {s(sT3)}, 256")
    A.i(f"v_add_u32 v{vXHI}, {s(sT3)}, v{vT}")
    A.i(f"v_lshrrev_b32 v{vT}, 2, v{vJ}")
    A.i(f"v_and_b32 v{vT+1}, 1, v{vQ}")
    A.i(f"v_lshl_add_u32 v{vT}, v{vT+1}, 2, v{vT}")
    A.i(f"v_mul_lo_u32 v{vT}, v{vT}, {s(sT1)}")
    A.i(f"v_lshrrev_b32 v{vT+1}, 1, v{vQ}")
    A.i(f"v_lshl_add_u32 v{vT}, v{vT+1}, 8, v{vT}")
    A.i(f"v_and_b32 v{vT+1}, 3, v{vJ}")
    A.i(f"v_lshl_add_u32 v{vT+2}, v{vT+1}, 3, v{vT}")
    A.i(f"s_lshl_b32 {s(sT0)}, {s(sWN)}, 7")
    A.i(f"s_add_u32 {s(sT0)}, {s(sT0)}, {REG}")
    A.i(f"s_lshl_b32 {s(sT2)}, {s(sWM)}, 6")
    A.i(f"s_add_u32 {s(sT3)}, {s(sT0)}, {s(sT2)}")
    A.i(f"v_add_u32 v{vWLO}, {s(sT3)}, v{vT+2}")
    A.i(f"s_sub_u32 {s(sT3)}, {s(sT0)}, {s(sT2)}")
    A.i(f"s_add_u32 {s(sT3)}, {s(sT3)}, 64")
    A.i(f"v_add_u32 v{vWHI}, {s(sT3)}, v{vT+2}")
    for r in range(4):
        A.i(f"v_mov_b32 v{vONES+r}, 0x3f803f80")
    A.i(f"v_and_b32 v{vT}, 3, v{vJ}")
    A.i(f"v_cmp_eq_u32 {s(sM1,2)}, 1, v{vT}")
    A.i(f"v_cmp_eq_u32 {s(sM2,2)}, 2, v{vT}")
    A.i(f"v_cmp_eq_u32 {s(sM3,2)}, 3, v{vT}")
    A.i(f"v_lshrrev_b32 v{vT+1}, 2, v{vJ}")
    A.i(f"v_cmp_eq_u32 {s(sDIAG,2)}, v{vT+1}, v{vQ}")
    A.i(f"v_cmp_eq_u32 {s(sJ0,2)}, 0, v{vJ}")

def _wlane(A, stride, qb):
    A.i(f"v_and_b32 v{vT}, 7, v{vLANE}")
    A.i(f"v_bfe_u32 v{vT+2}, v{vLANE}, 4, 2")
    A.i(f"v_lshlrev_b32 v{vT+2}, 6, v{vT+2}")
    A.i(f"v_bfe_u32 v{vT+1}, v{vLANE}, 3, 1")
    A.i(f"v_add_u32 v{vT+2}, v{vT+2}, v{vT+1}")
    A.i(f"s_lshl_b32 {s(sT0)}, {s(sIDX)}, 1")
    A.i(f"v_add_u32 v{vT+2}, {s(sT0)}, v{vT+2}")
    A.i(f"v_mul_u32_u24 v{vT+1}, {stride}, v{vT+2}")
    A.i(f"v_lshl_add_u32 v{vT+1}, v{vT}, 7, v{vT+1}")
    A.i(f"s_lshr_b32 {s(sT0)}, {s(sXCD)}, 1")
    A.i(f"s_mul_i32 {s(sT1)}, {s(sT0)}, {qb}")
    A.i(f"v_add_u32 v{vT}, {s(sT1)}, v{vT+1}")
def _wtouch(A, r, stride, cnt=True):
    for d in range(3):
        A.i(f"s_mov_b32 {s(sTS)}, {d*256*stride}")
        A.i(f"buffer_load_dword v{vT}, {s(r,4)}, {s(sTS)} offen lds")

def helper_touches_p1(A, gate=True):
    Lw3, Lj = A.newlabel("tw3"), A.newlabel("tjoin")
    A.i(f"s_mov_b32 m0, {TSCR}")
    A.i(f"s_cmp_eq_u32 {s(sWAVE)}, 3")
    A.i(f"s_cbranch_scc1 {Lw3}")
    A.i(f"v_and_b32 v{vT+1}, 31, v{vLANE}")
    A.i(f"s_and_b32 {s(sT0)}, {s(sXCD)}, 1")
    A.i(f"s_lshl_b32 {s(sT0)}, {s(sT0)}, 10")
    A.i(f"s_lshl_b32 {s(sT1)}, {s(sIDX)}, 5")
    A.i(f"s_add_u32 {s(sT0)}, {s(sT0)}, {s(sT1)}")
    A.i(f"v_add_u32 v{vT+1}, {s(sT0)}, v{vT+1}")
    A.i(f"v_mul_u32_u24 v{vT+1}, 1280, v{vT+1}")
    A.i(f"v_lshrrev_b32 v{vT}, 5, v{vLANE}")
    A.i(f"v_lshl_add_u32 v{vT}, v{vT}, 7, v{vT+1}")
    for d in range(5):
        A.i(f"s_movk_i32 {s(sTS)}, {d*256}")
        A.i(f"buffer_load_dword v{vT}, {s(rX,4)}, {s(sTS)} offen lds")
    if gate: A.i("s_waitcnt vmcnt(4)")
    A.i(f"s_branch {Lj}")
    A.label(Lw3)
    _wlane(A, 3840, 1024); _wtouch(A, rWQKV, 3840)
    if gate: A.i("s_waitcnt vmcnt(2)")
    A.label(Lj)
    A.vmq += ["t"] * 5

def helper_touches_p2(A):
    Lw3, Lj = A.newlabel("tw3"), A.newlabel("tjoin")
    A.i(f"s_mov_b32 m0, {TSCR}")
    _wlane(A, 3456, 896)
    A.i(f"s_cmp_eq_u32 {s(sWAVE)}, 3")
    A.i(f"s_cbranch_scc1 {Lw3}")
    _wtouch(A, rWG, 3456)
    A.i(f"s_branch {Lj}")
    A.label(Lw3)
    _wtouch(A, rWU, 3456)
    A.label(Lj)
    A.vmq += ["t"] * 3

def build_lists():
    bundles, groups = [], []
    ring = [0]
    def wring():
        r = vWR + (ring[0] % NRING) * 4
        ring[0] += 1
        return r
    for st in range(10):
        for ks in range(2):
            T = 2 * st + ks
            xb = []
            for rb in range(4):
                base = vXLOc if rb < 2 else vXHIc
                xb.append(f"ds_read_b128 {xfrag(T, rb)}, v{base} offset:{(rb%2)*128 + ks*64}")
            bundles.append((st, ("x", T), xb))
            for c in range(4):
                r = wring()
                base = vWLOc if c < 2 else vWHIc
                bundles.append((st, ("w", T, c), [f"ds_read_b64_tr_b16 {v(r,2)}, v{base} offset:{ks*512 + (c%2)*32}",
                                                  f"ds_read_b64_tr_b16 {v(r+2,2)}, v{base} offset:{8448 + ks*512 + (c%2)*32}"]))
                m = []
                first = (T == 0)
                for rb in range(4):
                    d = v(vACC + (c*4+rb)*4, 4)
                    m.append(f"v_mfma_f32_16x16x32_bf16 {d}, {v(r,4)}, {xfrag(T, rb)}, {'0' if first else d}")
                if c < 2:
                    d = v(vCS1 + c*4, 4)
                    m.append(f"v_mfma_f32_16x16x32_bf16 {d}, {v(r,4)}, {v(vONES,4)}, {'0' if first else d}")
                else:
                    rb = c - 2
                    d = v(vST + rb*8, 4)
                    m.append(f"v_mfma_f32_16x16x32_bf16 {d}, {v(vONES,4)}, {xfrag(T, rb)}, {'0' if first else d}")
                    d = v(vST + rb*8 + 4, 4)
                    m.append(f"v_mfma_f32_16x16x32_bf16 {d}, {xfrag(T, rb)}, {xfrag(T, rb)}, {'0' if first else d}")
                groups.append((st, [("x", T), ("w", T, c)], m))
    np1 = len(groups)
    for st in range(10, 20):
        for ks in range(2):
            T = 2 * (st - 10) + ks
            for b in range(7):
                r = wring()
                base = vWLOc if b < 4 else vWHIc
                bo = (b if b < 4 else b - 4) * 16
                bundles.append((st, ("g", T, b), [f"ds_read_b64_tr_b16 {v(r,2)}, v{base} offset:{ks*512 + bo}",
                                                  f"ds_read_b64_tr_b16 {v(r+2,2)}, v{base} offset:{8448 + ks*512 + bo}"]))
                m = []
                first = (T == 0)
                for rb in range(4):
                    d = v(vACC + (b*4+rb)*4, 4)
                    m.append(f"v_mfma_f32_16x16x32_bf16 {d}, {v(r,4)}, {xfrag(T, rb)}, {'0' if first else d}")
                if b < 4:
                    d = v(vCS2 + b*4, 4)
                    m.append(f"v_mfma_f32_16x16x32_bf16 {d}, {v(r,4)}, {v(vONES,4)}, {'0' if first else d}")
                groups.append((st, [("g", T, b)], m))
    return bundles, groups, np1

def run(A, loader, hook=None, stamp=None, EARLY=1, repack=None):
    bundles, groups, np1 = build_lists()
    state = dict(bi=0, cur=-1, pend=[], popped=0, pushed=0, due={})
    def pop_pend():
        state["pend"].pop(0)(); state["popped"] += 1
    def push_dma(t):
        state["pend"] += dma_ops(A, t)
        state["due"][t] = state["popped"] + len(state["pend"])
    LOOK = 4
    def open_stage(st):
        A.c(f"--- open stage {st}")
        while state["due"].get(st, 0) > state["popped"]: pop_pend()
        if loader: A.wait_vm(("dma", st))
        if FINE and st in FINE: FINE[st]("pre")
        A.wait_lg(None)
        A.i("s_barrier")
        if FINE and st in FINE: FINE[st]("post")
        slot = st % 4
        if st == 10:
            A.i(f"s_movk_i32 {s(sT1)}, 1056")
            A.i(f"v_lshrrev_b32 v{vT}, 2, v{vJ}")
            A.i(f"v_and_b32 v{vT+1}, 1, v{vQ}")
            A.i(f"v_lshl_add_u32 v{vT}, v{vT+1}, 2, v{vT}")
            A.i(f"v_mul_lo_u32 v{vT}, v{vT}, {s(sT1)}")
            A.i(f"v_lshrrev_b32 v{vT+1}, 1, v{vQ}")
            A.i(f"v_lshl_add_u32 v{vT}, v{vT+1}, 8, v{vT}")
            A.i(f"v_and_b32 v{vT+1}, 1, v{vJ}")
            A.i(f"v_lshl_add_u32 v{vT}, v{vT+1}, 3, v{vT}")
            A.i(f"v_bfe_u32 v{vT+1}, v{vJ}, 1, 1")
            A.i(f"s_movk_i32 {s(sT1)}, {REG+16}")
            A.i(f"v_mad_u32_u24 v{vT}, v{vT+1}, {s(sT1)}, v{vT}")
            A.i(f"s_mul_i32 {s(sT0)}, {s(sWN)}, {7*16}")
            A.i(f"s_mul_i32 {s(sT2)}, {s(sWM)}, {3*16}")
            A.i(f"s_add_u32 {s(sT3)}, {s(sT0)}, {s(sT2)}")
            A.i(f"v_add_u32 v{vWLO}, {s(sT3)}, v{vT}")
            A.i(f"s_lshl_b32 {s(sT2)}, {s(sWM)}, 6")
            A.i(f"s_sub_u32 {s(sT3)}, {s(sT0)}, {s(sT2)}")
            A.i(f"s_add_u32 {s(sT3)}, {s(sT3)}, 64")
            A.i(f"v_add_u32 v{vWHI}, {s(sT3)}, v{vT}")
        if st < 10:
            A.i(f"v_add_u32 v{vXLOc}, {slot*SLOT}, v{vXLO}")
            A.i(f"v_add_u32 v{vXHIc}, {slot*SLOT}, v{vXHI}")
        A.i(f"v_add_u32 v{vWLOc}, {slot*SLOT}, v{vWLO}")
        A.i(f"v_add_u32 v{vWHIc}, {slot*SLOT}, v{vWHI}")
        state["cur"] = st
        if loader:
            if st == 0:
                for t in range(EARLY, 4): push_dma(t)
            elif st + 3 < 20:
                push_dma(st + 3)
        if hook: hook(st, state["pend"])
    def issued(t): return any(bundles[k][1] == t for k in range(state["bi"]))
    def wahead(gi):
        return sum(1 for k in range(state["bi"]) if bundles[k][1][0] in ("w", "g")) - (gi + 1)
    def issue_bundle():
        st, tag, ins = bundles[state["bi"]]
        if st != state["cur"]: open_stage(st)
        for x in ins: A.ds(x, tag)
        state["bi"] += 1
    def run_groups(g0, g1, blimit):
        for gi in range(g0, g1):
            st, needs, m = groups[gi]
            while not all(issued(t) for t in needs): issue_bundle()
            for t in needs: A.wait_lg(t)
            for mi, ins in enumerate(m):
                A.i(ins)
                if mi == 0:
                    while state["bi"] < blimit and wahead(gi) < LOOK and bundles[state["bi"]][0] == state["cur"]:
                        issue_bundle()
                elif mi == 3:
                    if state["bi"] < blimit and wahead(gi) < LOOK and bundles[state["bi"]][0] != state["cur"]:
                        issue_bundle()
                        while state["bi"] < blimit and wahead(gi) < LOOK and bundles[state["bi"]][0] == state["cur"]:
                            issue_bundle()
                else:
                    k = 0
                    while state["pend"] and k < 2:
                        n0 = len(A.vmq)
                        pop_pend()
                        k += 1
                        if len(A.vmq) > n0: break
    nb1 = sum(1 for b in bundles if b[0] < 10)
    run_groups(0, np1, nb1)
    while state["pend"]: pop_pend()
    if stamp: stamp(1)
    p1_epilogue(A, repack)
    if stamp: stamp(2)
    run_groups(np1, len(groups), len(bundles))
    while state["pend"]: pop_pend()
    if stamp: stamp(3)
    p2_epilogue(A)
    if stamp: stamp(4)

def p1_epilogue(A, repack):
    A.c("==== P1 epilogue ====")
    A.nop(10)
    for rb in range(2):
        d1 = vST + rb*8; d2 = d1 + 4
        t = vT + rb*2
        A.i(f"v_cndmask_b32 v{d2}, v{d2}, v{d2+1}, {s(sM1,2)}")
        A.i(f"v_cndmask_b32 v{d2}, v{d2}, v{d2+2}, {s(sM2,2)}")
        A.i(f"v_cndmask_b32 v{d2}, v{d2}, v{d2+3}, {s(sM3,2)}")
        A.i(f"v_mul_f32 v{t}, {1.0/640}, v{d1}")
        A.i(f"v_mul_f32 v{d2}, {1.0/640}, v{d2}")
        A.i(f"v_fma_f32 v{d2}, -v{t}, v{t}, v{d2}")
        A.i(f"v_add_f32 v{d2}, 0x3727c5ac, v{d2}")
        A.i(f"v_rsq_f32 v{t+1}, v{d2}")
    A.i(f"s_lshl_b32 {s(sT0)}, {s(sWM)}, 9")
    A.i(f"s_lshl_b32 {s(sT2)}, {s(sWN)}, 8")
    A.i(f"s_add_u32 {s(sT3)}, {s(sT0)}, {s(sT2)}")
    A.i(f"s_add_u32 {s(sT3)}, {s(sT3)}, {STATS}")
    A.i(f"v_lshlrev_b32 v{vST}, 3, v{vJ}")
    A.i(f"v_add_u32 v{vST+1}, {s(sT3)}, v{vST}")
    A.i(f"s_sub_u32 {s(sT3)}, {s(sT0)}, {s(sT2)}")
    A.i(f"s_add_u32 {s(sT3)}, {s(sT3)}, {STATS+256}")
    A.i(f"v_add_u32 v{vST+2}, {s(sT3)}, v{vST}")
    A.i(f"s_mov_b64 exec, {s(sDIAG,2)}")
    A.ds(f"ds_write_b64 v{vST+1}, {v(vT,2)}")
    A.ds(f"ds_write_b64 v{vST+1}, {v(vT+2,2)} offset:128")
    A.i(f"s_mov_b64 exec, -1")
    A.i(f"s_lshl_b32 {s(sT0)}, {s(sWN)}, 8")
    A.i(f"s_lshl_b32 {s(sT2)}, {s(sWM)}, 7")
    A.i(f"s_add_u32 {s(sT3)}, {s(sT0)}, {s(sT2)}")
    A.i(f"s_add_u32 {s(sT3)}, {s(sT3)}, {CS1}")
    A.i(f"v_lshlrev_b32 v{vST}, 4, v{vQ}")
    A.i(f"v_add_u32 v{vST+3}, {s(sT3)}, v{vST}")
    A.i(f"s_sub_u32 {s(sT3)}, {s(sT0)}, {s(sT2)}")
    A.i(f"s_add_u32 {s(sT3)}, {s(sT3)}, {CS1+128}")
    A.i(f"v_add_u32 v{vST+4}, {s(sT3)}, v{vST}")
    A.i(f"s_mov_b64 exec, {s(sJ0,2)}")
    A.ds(f"ds_write_b128 v{vST+3}, {v(vCS1,4)}")
    A.ds(f"ds_write_b128 v{vST+3}, {v(vCS1+4,4)} offset:64")
    A.i(f"s_mov_b64 exec, -1")
    A.wait_lg(None)
    A.i("s_barrier")
    for rb in range(4):
        base = vST+1 if rb < 2 else vST+2
        A.ds(f"ds_read_b64 {v(vST+8+rb*2,2)}, v{base} offset:{(rb%2)*128}")
    for c in range(4):
        base = vST+3 if c < 2 else vST+4
        A.ds(f"ds_read_b128 {v(vCS1+c*4,4)}, v{base} offset:{(c%2)*64}")
    A.wait_lg(None)
    for rb in range(4):
        A.i(f"v_mov_b32 v{vMEAN+rb}, v{vST+8+rb*2}")
        A.i(f"v_mov_b32 v{vRSTD+rb}, v{vST+9+rb*2}")
    cs = DH ** -0.5 * math.log2(math.e)
    csbits = struct.unpack("<I", struct.pack("<f", cs))[0]
    A.i(f"s_cmp_lt_u32 {s(sCT)}, 5")
    A.i(f"s_cselect_b32 {s(sT0)}, {csbits:#x}, 1.0")
    for rb in range(4):
        A.i(f"v_mul_f32 v{vST+8+rb}, {s(sT0)}, v{vRSTD+rb}")
    A.i(f"v_lshlrev_b32 v{vST}, 14, v{vQ}")
    A.i(f"v_lshl_add_u32 v{vST}, v{vJ}, 4, v{vST}")
    A.i(f"s_lshl_b32 {s(sT0)}, {s(sCT)}, 19")
    A.i(f"s_lshl_b32 {s(sT1)}, {s(sWN)}, 18")
    A.i(f"s_add_u32 {s(sT0)}, {s(sT0)}, {s(sT1)}")
    A.i(f"s_lshl_b32 {s(sT1)}, {s(sRT)}, 10")
    A.i(f"s_add_u32 {s(sT0)}, {s(sT0)}, {s(sT1)}")
    A.i(f"s_lshl_b32 {s(sT1)}, {s(sWM)}, 9")
    A.i(f"s_add_u32 {s(sT0)}, {s(sT0)}, {s(sT1)}")
    if QKV_OFF: A.i(f"s_add_u32 {s(sT0)}, {s(sT0)}, {QKV_OFF}")
    A.i(f"s_cmp_ge_u32 {s(sCT)}, 15")
    A.i(f"s_cselect_b32 {s(sT0)}, 0x40000000, {s(sT0)}")
    for c in range(4):
        for pi in range(2):
            o = vWR + ((c*2+pi) % 4) * 4
            for h in range(2):
                rb = 2*pi + h
                ac = vACC + (c*4+rb)*4
                for r in range(4):
                    A.i(f"v_fma_f32 v{ac+r}, -v{vMEAN+rb}, v{vCS1+c*4+r}, v{ac+r}")
                for r in range(4):
                    A.i(f"v_mul_f32 v{ac+r}, v{vST+8+rb}, v{ac+r}")
                A.i(f"v_cvt_pk_bf16_f32 v{o+2*h}, v{ac}, v{ac+1}")
                A.i(f"v_cvt_pk_bf16_f32 v{o+2*h+1}, v{ac+2}, v{ac+3}")
            A.i(f"s_lshl_b32 {s(sT1)}, {s(sWM)}, 1")
            A.i(f"s_add_u32 {s(sT1)}, {s(sT1)}, {c}")
            A.i(f"s_and_b32 {s(sT1)}, {s(sT1)}, 3")
            A.i(f"s_lshl_b32 {s(sT1)}, {s(sT1)}, 16")
            A.i(f"s_add_u32 {s(sT2)}, {s(sWN)}, {pi}")
            A.i(f"s_and_b32 {s(sT2)}, {s(sT2)}, 1")
            A.i(f"s_lshl_b32 {s(sT2)}, {s(sT2)}, 8")
            A.i(f"s_add_u32 {s(sT1)}, {s(sT1)}, {s(sT2)}")
            A.i(f"s_add_u32 {s(sT1)}, {s(sT1)}, {s(sT0)}")
            A.vm(f"buffer_store_dwordx4 {v(o,4)}, v{vST}, {s(rWS,4)}, {s(sT1)} offen sc1", "qkvst")
    if repack: repack()

def p2_epilogue(A):
    A.c("==== P2 epilogue ====")
    A.nop(10)
    A.i(f"s_mul_i32 {s(sT0)}, {s(sWN)}, {7*64}")
    A.i(f"s_add_u32 {s(sT0)}, {s(sT0)}, {CS2}")
    A.i(f"s_mul_i32 {s(sT2)}, {s(sWM)}, {3*64}")
    A.i(f"s_add_u32 {s(sT3)}, {s(sT0)}, {s(sT2)}")
    A.i(f"v_lshlrev_b32 v{vT}, 4, v{vQ}")
    A.i(f"v_add_u32 v{vT+1}, {s(sT3)}, v{vT}")
    A.i(f"s_lshl_b32 {s(sT2)}, {s(sWM)}, 8")
    A.i(f"s_sub_u32 {s(sT3)}, {s(sT0)}, {s(sT2)}")
    A.i(f"s_add_u32 {s(sT3)}, {s(sT3)}, 256")
    A.i(f"v_add_u32 v{vT+2}, {s(sT3)}, v{vT}")
    A.i(f"s_mov_b64 exec, {s(sJ0,2)}")
    for b in range(4):
        A.ds(f"ds_write_b128 v{vT+1}, {v(vCS2+b*4,4)} offset:{b*64}")
    A.i(f"s_mov_b64 exec, -1")
    A.wait_lg(None)
    A.i("s_barrier")
    def csreg(b): return vCS2 + b*4 if b < 4 else vWR + (b-4)*4
    for b in range(7):
        base = vT+1 if b < 4 else vT+2
        A.ds(f"ds_read_b128 {v(csreg(b),4)}, v{base} offset:{(b if b < 4 else b-4)*64}")
    A.i(f"v_cmp_gt_u32 vcc, 32, v{vLANE}")
    A.i("s_nop 1")
    vR2 = vWR + 12
    for pi in range(2):
        A.i(f"v_cndmask_b32 v{vR2+pi}, v{vRSTD+2*pi+1}, v{vRSTD+2*pi}, vcc")
        A.i(f"v_mul_f32 v{vR2+pi}, v{vR2+pi}, v{vR2+pi}")
    vO1, vO2, vQ1, vOT = vWR+14, vWR+15, vWR+16, vWR+17
    A.i(f"v_lshrrev_b32 v{vO1}, 5, v{vLANE}")
    A.i(f"s_mov_b32 {s(sT0)}, 55296")
    A.i(f"v_mul_lo_u32 v{vO1}, v{vO1}, {s(sT0)}")
    A.i(f"v_lshl_add_u32 v{vO1}, v{vJ}, 4, v{vO1}")
    A.i(f"v_and_b32 v{vQ1}, 1, v{vQ}")
    A.i(f"v_lshl_add_u32 v{vO2}, v{vQ1}, 3, v{vO1}")
    A.i(f"v_lshl_add_u32 v{vO1}, v{vQ1}, 8, v{vO1}")
    A.i(f"s_lshl_b32 {s(sT0)}, {s(sRT)}, 3")
    A.i(f"s_lshl_b32 {s(sT1)}, {s(sWM)}, 2")
    A.i(f"s_add_u32 {s(sT0)}, {s(sT0)}, {s(sT1)}")
    A.i(f"s_mul_i32 {s(sT0)}, {s(sT0)}, 55296")
    A.i(f"s_add_u32 {s(sT0)}, {s(sT0)}, {HB_OFF}")
    A.i(f"s_mul_i32 {s(sT4)}, {s(sCT)}, 14")
    A.i(f"s_mul_i32 {s(sT1)}, {s(sWN)}, 7")
    A.i(f"s_add_u32 {s(sT4)}, {s(sT4)}, {s(sT1)}")
    A.wait_lg(None)
    vX = vWR + 18
    for pi in range(2):
        for bp in range(4):
            blks = [2*bp, 2*bp+1] if bp < 3 else [6]
            for k, b in enumerate(blks):
                ra = vACC + (b*4 + 2*pi)*4
                rb_ = vACC + (b*4 + 2*pi+1)*4
                for r in range(4):
                    A.i(f"v_fma_f32 v{ra+r}, -v{vMEAN+2*pi}, v{csreg(b)+r}, v{ra+r}")
                    A.i(f"v_fma_f32 v{rb_+r}, -v{vMEAN+2*pi+1}, v{csreg(b)+r}, v{rb_+r}")
                A.i("s_nop 1")
                for r in range(4):
                    A.i(f"v_permlane32_swap_b32 v{ra+r}, v{rb_+r}")
                A.i("s_nop 1")
                for r in range(4):
                    A.i(f"v_mul_f32 v{ra+r}, v{ra+r}, v{rb_+r}")
                for r in range(4):
                    A.i(f"v_mul_f32 v{ra+r}, v{vR2+pi}, v{ra+r}")
                A.i(f"v_cvt_pk_bf16_f32 v{vX+2*k}, v{ra}, v{ra+1}")
                A.i(f"v_cvt_pk_bf16_f32 v{vX+2*k+1}, v{ra+2}, v{ra+3}")
            b0 = blks[0]
            if b0 < 4:
                A.i(f"s_mul_i32 {s(sT1)}, {s(sWM)}, 3")
                A.i(f"s_add_u32 {s(sT1)}, {s(sT1)}, {b0}")
            else:
                A.i(f"s_lshl_b32 {s(sT1)}, {s(sWM)}, 2")
                A.i(f"s_sub_u32 {s(sT1)}, {b0}, {s(sT1)}")
            A.i(f"s_add_u32 {s(sT1)}, {s(sT1)}, {s(sT4)}")
            A.i(f"s_add_u32 {s(sT2)}, {s(sWN)}, {pi}")
            A.i(f"s_and_b32 {s(sT2)}, {s(sT2)}, 1")
            A.i(f"s_mul_i32 {s(sT2)}, {s(sT2)}, {2*55296}")
            A.i(f"s_add_u32 {s(sT2)}, {s(sT2)}, {s(sT0)}")
            A.i(f"s_lshl_b32 {s(sT3)}, {s(sT1)}, 8")
            A.i(f"s_add_u32 {s(sT2)}, {s(sT2)}, {s(sT3)}")
            if len(blks) == 2:
                A.i("s_nop 0")
                A.i(f"v_permlane16_swap_b32 v{vX}, v{vX+2}")
                A.i(f"v_permlane16_swap_b32 v{vX+1}, v{vX+3}")
                A.i(f"v_add_u32 v{vOT}, {s(sT1)}, v{vQ1}")
                A.i(f"v_cmp_gt_u32 vcc, 216, v{vOT}")
                A.i("s_nop 1")
                A.i(f"v_cndmask_b32 v{vOT}, 0x40000000, v{vO1}, vcc")
                A.vm(f"buffer_store_dwordx4 {v(vX,4)}, v{vOT}, {s(rWS,4)}, {s(sT2)} offen sc1", "hst")
            else:
                A.i(f"s_cmp_lt_u32 {s(sT1)}, 216")
                A.i(f"s_cselect_b32 {s(sT3)}, 0, 0x40000000")
                A.i(f"v_or_b32 v{vOT}, {s(sT3)}, v{vO2}")
                A.vm(f"buffer_store_dwordx2 {v(vX,2)}, v{vOT}, {s(rWS,4)}, {s(sT2)} offen sc1", "hst")
            A.nop(2)
```

```python
from asmlib import *
from gen_common import *

VST = 3104
KOFF = 0
VOFF = 30720
MISC_ = 135168
ONES0 = MISC_ + 8192 + 160
ONES1 = MISC_ + 8192 + 4096 + 64
BOFF = MISC_ + 8192 + 8192
OST = MISC_ + 8192 + 8192 + 3072 + 0
assert OST + 10240 <= 163840 + 0 or True
OST = 65536 - 10240 + 12288
OST = 67584

aK, aV, aQ = 0, 80, 160
vMF, vMD = 176, 192
vS = [32, 48, 64]
vSF, vSD, vNM = 80, 96, 112
vP = [128, 136]
vO = [144, 160]
vTm = 16
sHP, sQB, sHH, sQH = 60, 61, 62, 63

def p3_ids(A):
    A.i(f"s_lshr_b32 {s(sT0)}, {s(sIDX)}, 4")
    A.i(f"s_lshl_b32 {s(sHP)}, {s(sXCD)}, 1")
    A.i(f"s_add_u32 {s(sHP)}, {s(sHP)}, {s(sT0)}")
    A.i(f"s_and_b32 {s(sQB)}, {s(sIDX)}, 15")
    A.i(f"s_and_b32 {s(sHH)}, {s(sWAVE)}, 1")
    A.i(f"s_lshr_b32 {s(sQH)}, {s(sWAVE)}, 1")

def p3_stage_kv(A, vA, sc1=""):
    ops = []
    def I(x): ops.append(lambda: A.i(x))
    I(f"v_lshlrev_b32 v{vA}, 4, v{vLANE}")
    I(f"s_sub_u32 {s(sT0)}, {s(sWAVE)}, 1")
    I(f"s_mul_i32 {s(sT0)}, {s(sT0)}, 160")
    I(f"s_mul_i32 {s(sT2)}, {s(sHP)}, 10")
    I(f"s_add_u32 {s(sT0)}, {s(sT0)}, {s(sT2)}")
    I(f"s_lshl_b32 {s(sT0)}, {s(sT0)}, 14")
    I(f"s_lshl_b32 {s(sT3)}, {s(sQB)}, 10")
    I(f"s_add_u32 {s(sT0)}, {s(sT0)}, {s(sT3)}")
    I(f"s_sub_u32 {s(sKV0)}, {s(sT0)}, {2048 - QKV_OFF}")
    I(f"s_cmp_eq_u32 {s(sWAVE)}, 2")
    I(f"s_movk_i32 {s(sT2)}, {KOFF}")
    I(f"s_cselect_b32 {s(sKV1)}, {s(sT2)}, {VOFF}")
    I(f"s_movk_i32 {s(sT2)}, 3072")
    I(f"s_cselect_b32 {s(sKV2)}, {s(sT2)}, {VST}")
    for p in range(3):
        I(f"s_add_u32 {s(sT3)}, {s(sQB)}, {p}")
        I(f"s_cmp_ge_u32 {s(sT3)}, 2")
        I(f"s_cselect_b32 {s(sT4)}, 0, 0x40000000")
        I(f"s_or_b32 {s(sKV3)}, {s(sKV0)}, {s(sT4)}")
        for g in range(10):
            I(f"s_mul_i32 {s(sT4)}, {s(sKV2)}, {g}")
            I(f"s_add_u32 {s(sT4)}, {s(sT4)}, {s(sKV1)}")
            I(f"s_add_u32 m0, {s(sT4)}, {p*1024}")
            I(f"s_add_u32 {s(sT3)}, {s(sKV3)}, {g*16384 + p*1024}")
            ops.append(lambda: A.vm(f"buffer_load_dwordx4 v{vA}, {s(rWS,4)}, {s(sT3)} offen {sc1} lds", "kv"))
    return ops

def p3_setup(A, sc1=""):
    A.c("==== P3 setup ====")
    vHI = vTm + 1; vJQ = vTm + 2
    A.i(f"v_lshrrev_b32 v{vHI}, 5, v{vLANE}")
    A.i(f"v_and_b32 v{vJQ}, 31, v{vLANE}")
    A.i(f"v_lshlrev_b32 v{vTm+3}, 15, v{vHI}")
    A.i(f"v_lshl_add_u32 v{vTm+3}, v{vJQ}, 3, v{vTm+3}")
    A.i(f"v_lshlrev_b32 v{vTm+4}, 3, v{vJQ}")
    A.i(f"s_lshl_b32 {s(sT1)}, {s(sHP)}, 1")
    A.i(f"s_add_u32 {s(sT1)}, {s(sT1)}, {s(sHH)}")
    A.i(f"s_mul_i32 {s(sT1)}, {s(sT1)}, {5*16384}")
    A.i(f"s_lshl_b32 {s(sT2)}, {s(sQB)}, 10")
    A.i(f"s_add_u32 {s(sT1)}, {s(sT1)}, {s(sT2)}")
    A.i(f"s_lshl_b32 {s(sT2)}, {s(sQH)}, 9")
    A.i(f"s_add_u32 {s(sT1)}, {s(sT1)}, {s(sT2)}")
    if QKV_OFF: A.i(f"s_add_u32 {s(sT1)}, {s(sT1)}, {QKV_OFF}")
    A.i(f"v_mov_b32 v{vTm+5}, 0")
    A.i(f"v_cmp_gt_u32 vcc, 32, v{vLANE}")
    A.i(f"v_mov_b32 v{vTm+6}, 0x3f80")
    A.i("s_nop 0")
    A.i(f"v_cndmask_b32 v{vTm+6}, 0, v{vTm+6}, vcc")
    for T in range(2):
        q = aQ + T*8
        A.i(f"v_accvgpr_write_b32 a{q+4}, v{vTm+5}")
        A.i(f"v_accvgpr_write_b32 a{q+5}, v{vTm+5}")
        A.i(f"v_accvgpr_write_b32 a{q+6}, v{vTm+6}")
        A.i(f"v_accvgpr_write_b32 a{q+7}, v{vTm+5}")
    A.i(f"s_add_u32 {s(sT2)}, {s(sT1)}, {4*16384}")
    A.i(f"s_add_u32 {s(sT3)}, {s(sT1)}, 16384")
    for T in range(2):
        q = aQ + T*8
        A.vm(f"buffer_load_dwordx2 {a(q,2)}, v{vTm+3}, {s(rWS,4)}, {s(sT1)} offen offset:{T*256} {sc1}", "q")
        A.vm(f"buffer_load_dwordx2 {a(q+2,2)}, v{vTm+3}, {s(rWS,4)}, {s(sT3)} offen offset:{T*256} {sc1}", "q")
    A.i("s_mov_b32 exec_hi, 0")
    for T in range(2):
        q = aQ + T*8
        A.vm(f"buffer_load_dwordx2 {a(q+4,2)}, v{vTm+4}, {s(rWS,4)}, {s(sT2)} offen offset:{T*256} {sc1}", "q")
    A.i("s_mov_b64 exec, -1")
    A.i(f"v_lshlrev_b32 v{vTm+5}, 3, v0")
    A.i(f"v_mov_b32 v{vTm+6}, 0x3f803f80")
    A.i(f"v_mov_b32 v{vTm+7}, 0x3f803f80")
    A.i(f"v_add_u32 v{vTm+10}, {ONES0}, v{vTm+5}")
    A.i(f"v_add_u32 v{vTm+11}, {BOFF}, v{vTm+5}")
    A.ds(f"ds_write_b64 v{vTm+10}, {v(vTm+6,2)}")
    A.ds(f"ds_write_b64 v{vTm+10}, {v(vTm+6,2)} offset:{ONES1-ONES0}")
    A.i(f"s_lshl_b32 {s(sT2)}, {s(sQB)}, 7")
    A.i(f"s_sub_u32 {s(sT2)}, 256, {s(sT2)}")
    A.i(f"v_mov_b32 v{vTm+8}, 0xf149")
    A.i(f"v_mov_b32 v{vTm+9}, 0")
    A.i(f"v_cmp_gt_i32 vcc, {s(sT2)}, v0")
    A.i("s_nop 1")
    A.i(f"v_cndmask_b32 v{vTm+8}, 0, v{vTm+8}, vcc")
    A.ds(f"ds_write_b64 v{vTm+11}, {v(vTm+8,2)}")
    A.i(f"v_cmp_gt_u32 vcc, 128, v0")
    A.i(f"v_mov_b32 v{vTm+12}, 0")
    A.i(f"v_mov_b32 v{vTm+13}, 0")
    A.i("s_and_saveexec_b64 s[72:73], vcc")
    A.ds(f"ds_write_b64 v{vTm+10}, {v(vTm+6,2)} offset:2048")
    A.ds(f"ds_write_b64 v{vTm+10}, {v(vTm+6,2)} offset:{ONES1-ONES0+2048}")
    A.ds(f"ds_write_b64 v{vTm+11}, {v(vTm+12,2)} offset:2048")
    A.i("s_mov_b64 exec, s[72:73]")
    A.i(f"v_lshlrev_b32 v{vTm+5}, 2, v{vHI}")
    A.i(f"v_mov_b32 v{vTm+7}, 0xf149f2ca")
    for r in range(16):
        A.i(f"v_add_u32 v{vTm+6}, {8*(r//4) + r%4}, v{vTm+5}")
        A.i(f"v_cmp_gt_u32 vcc, v{vTm+6}, v{vJQ}")
        A.i("s_nop 1")
        A.i(f"v_cndmask_b32 v{vMF+r}, v{vTm+7}, 0, vcc")
        A.i(f"v_cndmask_b32 v{vMD+r}, 0, v{vTm+7}, vcc")

def p3_compute(A, st_flags="", st2=None, after_staged=None, side=None):
    side = side if side is not None else []
    vHI = vTm + 1; vJQ = vTm + 2
    A.wait_vm("q")
    A.wait_lg(None)
    if after_staged: after_staged()
    A.i("s_barrier")
    vKA, vKB, vVA = vTm+3, vTm+4, vTm+5
    A.i(f"s_mul_i32 {s(sT0)}, {s(sHH)}, {5*3072}")
    A.i(f"s_lshl_b32 {s(sT1)}, {s(sQH)}, 9")
    A.i(f"s_add_u32 {s(sT0)}, {s(sT0)}, {s(sT1)}")
    A.i(f"v_mul_u32_u24 v{vKA}, {2*3072}, v{vHI}")
    A.i(f"v_lshl_add_u32 v{vKA}, v{vJQ}, 3, v{vKA}")
    A.i(f"v_add_u32 v{vKA}, {s(sT0)}, v{vKA}")
    A.i(f"v_lshlrev_b32 v{vKB}, 3, v{vJQ}")
    A.i(f"v_add_u32 v{vTm+6}, {s(sT0)}, v{vKB}")
    A.i(f"s_add_u32 {s(sT2)}, {s(sT1)}, {BOFF}")
    A.i(f"v_add_u32 v{vKB}, {s(sT2)}, v{vKB}")
    A.i(f"v_and_b32 v{vTm+8}, 1, v{vQ}")
    A.i(f"v_and_b32 v{vTm+7}, 3, v{vJ}")
    A.i(f"v_lshl_add_u32 v{vTm+8}, v{vTm+8}, 2, v{vTm+7}")
    A.i(f"s_movk_i32 {s(sT3)}, {VST}")
    A.i(f"v_mul_lo_u32 v{vTm+9}, v{vTm+8}, {s(sT3)}")
    A.i(f"s_mul_i32 {s(sT3)}, {s(sHH)}, {5*VST}")
    A.i(f"s_add_u32 {s(sT3)}, {s(sT3)}, {VOFF}")
    A.i(f"v_add_u32 v{vTm+9}, {s(sT3)}, v{vTm+9}")
    A.i(f"s_mul_i32 {s(sT3)}, {s(sHH)}, {ONES1-ONES0}")
    A.i(f"s_add_u32 {s(sT3)}, {s(sT3)}, {ONES0}")
    A.i(f"v_mov_b32 v{vTm+10}, {s(sT3)}")
    A.i(f"v_cmp_gt_u32 vcc, 5, v{vTm+8}")
    A.i("s_nop 1")
    A.i(f"v_cndmask_b32 v{vTm+9}, v{vTm+10}, v{vTm+9}, vcc")
    A.i(f"v_lshrrev_b32 v{vTm+7}, 2, v{vJ}")
    A.i(f"v_lshl_add_u32 v{vTm+7}, v{vHI}, 2, v{vTm+7}")
    A.i(f"v_lshl_add_u32 v{vVA}, v{vTm+7}, 3, v{vTm+9}")
    A.i(f"v_add_u32 v{vVA}, {s(sT1)}, v{vVA}")
    for k in range(10):
        f0 = aK + 8*k
        A.ds(f"ds_read_b64 {a(f0,2)}, v{vKA} offset:{KOFF + k*256}", ("k", k))
        A.ds(f"ds_read_b64 {a(f0+2,2)}, v{vKA} offset:{KOFF + 3072 + k*256}", ("k", k))
        A.ds(f"ds_read_b64 {a(f0+4,2)}, v{vTm+6} offset:{KOFF + 4*3072 + k*256}", ("k", k))
        A.ds(f"ds_read_b64 {a(f0+6,2)}, v{vKB} offset:{k*256}", ("k", k))
    vreads = []
    for k in range(10):
        for m in range(2):
            f = aV + 8*k + 4*m
            vreads.append(f"ds_read_b64_tr_b16 {a(f,2)}, v{vVA} offset:{k*256 + m*128}")
            vreads.append(f"ds_read_b64_tr_b16 {a(f+2,2)}, v{vVA} offset:{k*256 + m*128 + 64}")
    if st2: st2(2)
    vM, vM2 = vTm+11, vTm+12
    def pop_side(n=1):
        for _ in range(n):
            if side: side.pop(0)()
    for T in range(2):
        q0, q1 = a(aQ+T*8, 4), a(aQ+T*8+4, 4)
        A.c(f"---- P3 tile {T} pass 1")
        def sreg(t): return vSF if t == 0 else (vSD if t == 8 else vS[t % 3])
        A.i(f"v_mov_b32 v{vM}, 0xf149f2ca")
        def maxops(t):
            r = sreg(t)
            for e in range(0, 16, 2):
                A.i(f"v_max3_f32 v{vM}, v{r+e}, v{r+e+1}, v{vM}")
        for t in range(9):
            k = T + t
            A.wait_lg(("k", k))
            d = v(sreg(t), 16)
            c = v(vMF, 16) if t == 0 else (v(vMD, 16) if t == 8 else "0")
            A.i(f"v_mfma_f32_32x32x16_bf16 {d}, {a(aK+8*k,4)}, {q0}, {c}")
            for _ in range(3):
                if vreads: A.ds(vreads.pop(0), "v")
            A.i(f"v_mfma_f32_32x32x16_bf16 {d}, {a(aK+8*k+4,4)}, {q1}, {d}")
            for _ in range(2):
                if vreads: A.ds(vreads.pop(0), "v")
            if t >= 2: maxops(t-2)
            if T == 1: pop_side(2)
        while vreads: A.ds(vreads.pop(0), "v")
        A.nop(2); maxops(7)
        A.nop(4); maxops(8)
        A.i(f"v_mov_b32 v{vM2}, v{vM}")
        A.i("s_nop 1")
        A.i(f"v_permlane32_swap_b32 v{vM}, v{vM2}")
        A.i("s_nop 1")
        A.i(f"v_max_f32 v{vM}, v{vM}, v{vM2}")
        for r in range(16):
            A.i(f"v_sub_f32 v{vNM+r}, 0, v{vM}")
        if st2 and T == 0: st2(3)
        A.c(f"---- P3 tile {T} pass 2")
        A.wait_lg("v")
        o = v(vO[T], 16)
        order = [0, 1, 2, 3, 4, 5, 6, 7, 8]
        def stageA(t):
            if t in (0, 8): return []
            k = T + t
            d = v(vS[t % 3], 16)
            return [f"v_mfma_f32_32x32x16_bf16 {d}, {a(aK+8*k,4)}, {q0}, {v(vNM,16)}",
                    f"v_mfma_f32_32x32x16_bf16 {d}, {a(aK+8*k+4,4)}, {q1}, {d}"]
        def stageC(n):
            t = order[n]; k = T + t; P = vP[n % 2]
            return [f"v_mfma_f32_32x32x16_bf16 {o}, {a(aV+8*k,4)}, {v(P,4)}, {'0' if n == 0 else o}",
                    f"v_mfma_f32_32x32x16_bf16 {o}, {a(aV+8*k+4,4)}, {v(P+4,4)}, {o}"]
        A.nop(2)
        for ins in stageA(1): A.i(ins)
        for n, t in enumerate(order):
            r = sreg(t); P = vP[n % 2]
            mf = []
            if n >= 1: mf += stageC(n-1)
            if n + 1 < len(order) and n >= 1: mf += stageA(order[n+1])
            valu = []
            if t in (0, 8):
                for e in range(16): valu.append((f"v_sub_f32 v{r+e}, v{r+e}, v{vM}", 4))
            for e in range(8):
                valu.append((f"v_exp_f32 v{r+2*e}, v{r+2*e}", 8))
                valu.append((f"v_exp_f32 v{r+2*e+1}, v{r+2*e+1}", 8))
                if e >= 1: valu.append((f"v_cvt_pk_bf16_f32 v{P+e-1}, v{r+2*e-2}, v{r+2*e-1}", 4))
            valu.append(("s_nop 0", 4))
            valu.append((f"v_cvt_pk_bf16_f32 v{P+7}, v{r+14}, v{r+15}", 4))
            tot = sum(c for _, c in valu)
            acc = 0; k = 0
            for ins, c in valu:
                while k < len(mf) and acc >= k * tot / max(len(mf), 1):
                    A.i(mf[k]); k += 1
                A.i(ins); acc += c
            while k < len(mf): A.i(mf[k]); k += 1
            pop_side(3)
        A.nop(2)
        for ins in stageC(len(order)-1): A.i(ins)
    while side: side.pop(0)()
    A.c("---- P3 output")
    if st2: st2(4)
    A.nop(14)
    vOA, vU = vTm+3, vTm+4
    A.i(f"s_mul_i32 {s(sT0)}, {s(sHH)}, 5")
    A.i(f"v_add_u32 v{vU}, {s(sT0)}, v{vHI}")
    A.i(f"v_lshrrev_b32 v{vOA}, 1, v{vU}")
    A.i(f"v_lshlrev_b32 v{vOA}, 8, v{vOA}")
    A.i(f"v_and_b32 v{vU}, 1, v{vU}")
    A.i(f"v_lshl_add_u32 v{vOA}, v{vU}, 3, v{vOA}")
    A.i(f"v_and_b32 v{vU}, 1, v{vJQ}")
    A.i(f"v_mul_u32_u24 v{vU}, 1280, v{vU}")
    A.i(f"v_add_u32 v{vOA}, v{vOA}, v{vU}")
    A.i(f"v_lshrrev_b32 v{vU}, 1, v{vJQ}")
    A.i(f"v_lshl_add_u32 v{vOA}, v{vU}, 4, v{vOA}")
    A.i(f"s_mul_i32 {s(sT0)}, {s(sQH)}, {4*1280}")
    A.i(f"s_add_u32 {s(sT0)}, {s(sT0)}, {OST}")
    A.i(f"v_add_u32 v{vOA}, {s(sT0)}, v{vOA}")
    for T in range(2):
        o = vO[T]
        la, lb = vTm+6, vTm+7
        A.i(f"v_mov_b32 v{la}, v{o+8}")
        A.i(f"v_mov_b32 v{lb}, v{o+8}")
        A.i("s_nop 1")
        A.i(f"v_permlane32_swap_b32 v{la}, v{lb}")
        A.i("s_nop 1")
        A.i(f"v_rcp_f32 v{lb}, v{lb}")
        A.i("s_nop 0")
        for r in range(12):
            A.i(f"v_mul_f32 v{o+r}, v{lb}, v{o+r}")
        for t in range(3):
            A.i(f"v_cvt_pk_bf16_f32 v{o+4*t}, v{o+4*t}, v{o+4*t+1}")
            A.i(f"v_cvt_pk_bf16_f32 v{o+4*t+1}, v{o+4*t+2}, v{o+4*t+3}")
        A.ds(f"ds_write_b64 v{vOA}, {v(o,2)} offset:{T*2560}")
        A.ds(f"ds_write_b64 v{vOA}, {v(o+4,2)} offset:{T*2560+256}")
        A.i("s_mov_b32 exec_hi, 0")
        A.ds(f"ds_write_b64 v{vOA}, {v(o+8,2)} offset:{T*2560+512}")
        A.i("s_mov_b64 exec, -1")
    A.wait_lg(None)
    A.i("s_barrier")
    A.i(f"s_mul_i32 {s(sT0)}, {s(sQB)}, {8*20480}")
    A.i(f"s_mul_i32 {s(sT1)}, {s(sHP)}, {5*256}")
    A.i(f"s_add_u32 {s(sT0)}, {s(sT0)}, {s(sT1)}")
    A.i(f"s_add_u32 {s(sT0)}, {s(sT0)}, {OB_OFF}")
    A.i(f"s_mov_b32 {s(sT1)}, 52429")
    for rd in range(3):
        n, t1, t2, la = vTm+6, vTm+7, vTm+8, vTm+9
        A.i(f"v_add_u32 v{n}, {256*rd}, v0")
        A.i(f"v_lshlrev_b32 v{la}, 4, v{n}")
        A.i(f"v_add_u32 v{la+1}, {OST}, v{la}")
        A.ds(f"ds_read_b128 {v(32+4*rd,4)}, v{la+1}")
        A.i(f"v_mul_lo_u32 v{t1}, v{n}, {s(sT1)}")
        A.i(f"v_lshrrev_b32 v{t1}, 22, v{t1}")
        A.i(f"v_mul_u32_u24 v{t2}, {20480-1280}, v{t1}")
        A.i(f"v_add_u32 v{48+rd}, v{t2}, v{la}")
    A.wait_lg(None)
    for rd in range(3):
        if rd == 2:
            A.i("v_cmp_gt_u32 vcc, 128, v0")
            A.i("s_and_saveexec_b64 s[72:73], vcc")
            lab = A.newlabel("p3st")
            A.i(f"s_cbranch_execz {lab}")
            A.i(f"buffer_store_dwordx4 {v(32+4*rd,4)}, v{48+rd}, {s(rWS,4)}, {s(sT0)} offen {st_flags}")
            A.label(lab)
            A.i("s_mov_b64 exec, s[72:73]")
            A.ost_partial = True
        else:
            A.vm(f"buffer_store_dwordx4 {v(32+4*rd,4)}, v{48+rd}, {s(rWS,4)}, {s(sT0)} offen {st_flags}", "ost")
```

```python
from asmlib import *
from gen_common import *

sR, sCC = 14, 15
sHBASE, sOBASE, sWB, sXO = 40, 41, 42, 43
vACC4 = 64
vL16 = 244
vXR = 184
NRG = 7
SLOTS = [("a", 176), ("a", 212), ("v", 208), ("a", 0), ("a", 36), ("a", 72), ("a", 108)]
def ring_regs(n):
    k, base = SLOTS[n % NRG]
    f = a if k == "a" else v
    act = [f(base + rb*4, 4) for rb in range(4)]
    w = [f(base + 16 + cb*4, 4) for cb in range(5)]
    return act, w
NS = 19
def is_h(n): return n < 14

def p45_setup(A):
    A.c("==== P4/5 setup ====")
    A.i(f"s_lshr_b32 {s(sT0)}, {s(sXCD)}, 1")
    A.i(f"s_lshl_b32 {s(sT0)}, {s(sT0)}, 3")
    A.i(f"s_and_b32 {s(sT1)}, {s(sIDX)}, 7")
    A.i(f"s_add_u32 {s(sR)}, {s(sT0)}, {s(sT1)}")
    A.i(f"s_and_b32 {s(sT0)}, {s(sXCD)}, 1")
    A.i(f"s_lshl_b32 {s(sT0)}, {s(sT0)}, 2")
    A.i(f"s_lshr_b32 {s(sT1)}, {s(sIDX)}, 3")
    A.i(f"s_add_u32 {s(sCC)}, {s(sT0)}, {s(sT1)}")
    A.i(f"v_lshlrev_b32 v{vL16}, 4, v{vLANE}")
    A.i(f"s_mul_i32 {s(sHBASE)}, {s(sR)}, {4*55296}")
    A.i(f"s_add_u32 {s(sHBASE)}, {s(sHBASE)}, {HB_OFF}")
    A.i(f"s_lshl_b32 {s(sT0)}, {s(sWAVE)}, 10")
    A.i(f"s_add_u32 {s(sHBASE)}, {s(sHBASE)}, {s(sT0)}")
    A.i(f"s_mul_i32 {s(sOBASE)}, {s(sR)}, {4*20480}")
    A.i(f"s_add_u32 {s(sOBASE)}, {s(sOBASE)}, {OB_OFF}")
    A.i(f"s_add_u32 {s(sOBASE)}, {s(sOBASE)}, {s(sT0)}")
    A.i(f"s_mul_i32 {s(sWB)}, {s(sWAVE)}, 40")
    A.i(f"s_mul_i32 {s(sT0)}, {s(sCC)}, 5")
    A.i(f"s_add_u32 {s(sWB)}, {s(sWB)}, {s(sT0)}")
    A.i(f"s_lshl_b32 {s(sWB)}, {s(sWB)}, 10")
    A.i(f"s_add_u32 {s(sWB)}, {s(sWB)}, {WT_OFF}")
    A.i(f"s_lshl_b32 {s(sT0)}, {s(sR)}, 6")
    A.i(f"s_lshr_b32 {s(sT1)}, {s(sWAVE)}, 1")
    A.i(f"s_lshl_b32 {s(sT1)}, {s(sT1)}, 5")
    A.i(f"s_add_u32 {s(sT0)}, {s(sT0)}, {s(sT1)}")
    A.i(f"s_and_b32 {s(sT1)}, {s(sWAVE)}, 1")
    A.i(f"s_add_u32 {s(sT0)}, {s(sT0)}, {s(sT1)}")
    A.i(f"s_mul_i32 {s(sT0)}, {s(sT0)}, 1280")
    A.i(f"s_mul_i32 {s(sT1)}, {s(sCC)}, 160")
    A.i(f"s_add_u32 {s(sXO)}, {s(sT0)}, {s(sT1)}")
    A.i(f"s_lshr_b32 {s(sRH)}, {s(sR)}, 1")

def loads(n, which, sc1=""):
    L = []
    act, w = ring_regs(n)
    if which == "w":
        ksg0 = 4*n if is_h(n) else 54 + 4*(n-14)
        off = ksg0 * 40 * 1024
        if n == 13:
            L.append(("i", f"s_cmp_lt_u32 {s(sWAVE)}, 2"))
            L.append(("i", f"s_cselect_b32 {s(sP0)}, {off}, 0x40000000"))
            L.append(("i", f"s_add_u32 {s(sP0)}, {s(sP0)}, {s(sWB)}"))
        else:
            L.append(("i", f"s_add_u32 {s(sP0)}, {s(sWB)}, {off}"))
        for cb in range(4):
            L.append(("vm", f"buffer_load_dwordx4 {w[cb]}, v{vL16}, {s(rWS,4)}, {s(sP0)} offen offset:{cb*1024} {sc1}", ("w", n)))
        L.append(("i", f"s_add_u32 {s(sP0)}, {s(sP0)}, 4096"))
        L.append(("vm", f"buffer_load_dwordx4 {w[4]}, v{vL16}, {s(rWS,4)}, {s(sP0)} offen {sc1}", ("w", n)))
    else:
        for rb in range(4):
            if is_h(n):
                off = n*4096 + rb*55296
                if n == 13:
                    L.append(("i", f"s_cmp_lt_u32 {s(sWAVE)}, 2"))
                    L.append(("i", f"s_cselect_b32 {s(sP1)}, {off}, 0x40000000"))
                    L.append(("i", f"s_add_u32 {s(sP1)}, {s(sP1)}, {s(sHBASE)}"))
                else:
                    L.append(("i", f"s_add_u32 {s(sP1)}, {s(sHBASE)}, {off}"))
            else:
                off = (n-14)*4096 + rb*20480
                L.append(("i", f"s_add_u32 {s(sP1)}, {s(sOBASE)}, {off}"))
            L.append(("vm", f"buffer_load_dwordx4 {act[rb]}, v{vL16}, {s(rWS,4)}, {s(sP1)} offen {sc1}", ("a", n)))
    return L

def as_closures(A, L):
    out = []
    for x in L:
        if x[0] == "i": out.append(lambda x=x: A.i(x[1]))
        elif x[0] == "call": out.append(x[1])
        else: out.append(lambda x=x: A.vm(x[1], x[2]))
    return out

def p45(A, done_w=0, done_a=0, wait_h=None, wait_o=None, sc1="", after_first=None, at_step={}):
    def emit1(x):
        if x[0] == "i": A.i(x[1])
        elif x[0] == "call": x[1]()
        else: A.vm(x[1], x[2])
    DP = NRG - 1
    for n in range(done_w, DP):
        for x in loads(n, "w", sc1): emit1(x)
    if wait_h: wait_h()
    for n in range(done_a, DP):
        for x in loads(n, "a", sc1): emit1(x)
    vXO = 24
    A.i(f"v_mul_u32_u24 v{vXO}, 2560, v{vJ}")
    A.i(f"v_lshl_add_u32 v{vXO}, v{vQ}, 3, v{vXO}")
    for cb in range(5):
        A.vm(f"buffer_load_dwordx2 {v(vXR+2*cb,2)}, v{vXO}, {s(rX,4)}, {s(sXO)} offen offset:{cb*32}", "xr")
    for n in range(NS):
        A.wait_vm(("w", n))
        A.wait_vm(("a", n))
        if n == 3 and after_first: after_first()
        if n in at_step: at_step[n]()
        side = []
        nn = n + DP
        if nn < NS:
            side += loads(nn, "w", sc1)
            if nn == 14 and wait_o: side.append(("call", wait_o))
            side += loads(nn, "a", sc1)
        act, w = ring_regs(n)
        mi = 0
        for cb in range(5):
            for rb in range(4):
                d = v(vACC4 + (rb*5 + cb)*4, 4)
                A.i(f"v_mfma_f32_16x16x32_bf16 {d}, {w[cb]}, {act[rb]}, {'0' if n == 0 else d}")
                if side and mi >= 1:
                    emit1(side.pop(0))
                mi += 1
        while side: emit1(side.pop(0))
    A.c("---- P4/5 reduction")
    A.nop(8)
    A.i(f"s_mul_i32 {s(sT1)}, {s(sWAVE)}, 20480")
    A.i(f"v_add_u32 v{vXO+1}, {s(sT1)}, v{vL16}")
    for tl in range(20):
        A.ds(f"ds_write_b128 v{vXO+1}, {v(vACC4+tl*4,4)} offset:{tl*1024}")
    A.wait_lg(None)
    A.i("s_barrier")
    A.i(f"s_mul_i32 {s(sT1)}, {s(sWAVE)}, 5120")
    A.i(f"v_add_u32 v{vXO+1}, {s(sT1)}, v{vL16}")
    A.i(f"v_add_u32 v{vXO+2}, {2*20480}, v{vXO+1}")
    for ww in range(4):
        for cb in range(5):
            base = vXO+1 if ww < 2 else vXO+2
            A.ds(f"ds_read_b128 {v(vACC4 + (ww*5+cb)*4, 4)}, v{base} offset:{(ww%2)*20480 + cb*1024}")
    A.wait_lg(None)
    A.wait_vm("xr")
    for cb in range(5):
        for r in range(4):
            d = vACC4 + cb*4 + r
            A.i(f"v_add_f32 v{d}, v{d}, v{d+20}")
            A.i(f"v_add_f32 v{d+40}, v{d+40}, v{d+60}")
        for r in range(4):
            d = vACC4 + cb*4 + r
            A.i(f"v_add_f32 v{d}, v{d}, v{d+40}")
        x = vXR + 2*cb
        t = 28
        A.i(f"v_lshlrev_b32 v{t}, 16, v{x}")
        A.i(f"v_and_b32 v{t+1}, 0xffff0000, v{x}")
        A.i(f"v_lshlrev_b32 v{t+2}, 16, v{x+1}")
        A.i(f"v_and_b32 v{t+3}, 0xffff0000, v{x+1}")
        for r in range(4):
            d = vACC4 + cb*4 + r
            A.i(f"v_add_f32 v{d}, v{d}, v{t+r}")
        d = vACC4 + cb*4
        A.i(f"v_cvt_pk_bf16_f32 v{x}, v{d}, v{d+1}")
        A.i(f"v_cvt_pk_bf16_f32 v{x+1}, v{d+2}, v{d+3}")
        A.vm(f"buffer_store_dwordx2 {v(x,2)}, v{vXO}, {s(rOUT,4)}, {s(sXO)} offen offset:{cb*32}", "out")

def repack_issue(A, RSCR, vA, sV, sub):
    A.c("---- repack issue")
    A.i(f"s_lshl_b32 {s(sT3)}, s2, 2")
    A.i(f"s_lshl_b32 {s(sT4)}, {s(sWAVE)}, 1")
    A.i(f"s_add_u32 {s(sT3)}, {s(sT3)}, {s(sT4)}")
    A.i(f"s_add_u32 {s(sT3)}, {s(sT3)}, {sub - 4}")
    A.i(f"s_mul_i32 {s(sT0)}, {s(sT3)}, 6554")
    A.i(f"s_lshr_b32 {s(sT0)}, {s(sT0)}, 16")
    A.i(f"s_mul_i32 {s(sT1)}, {s(sT0)}, 10")
    A.i(f"s_sub_u32 {s(sT1)}, {s(sT3)}, {s(sT1)}")
    A.i(f"s_mul_i32 {s(sV)}, {s(sT0)}, 40")
    A.i(f"s_lshl_b32 {s(sT2)}, {s(sT1)}, 2")
    A.i(f"s_add_u32 {s(sV)}, {s(sV)}, {s(sT2)}")
    A.i(f"s_lshl_b32 {s(sV)}, {s(sV)}, 10")
    A.i(f"s_add_u32 {s(sV)}, {s(sV)}, {WT_OFF}")
    A.i(f"s_cmp_lt_u32 {s(sT3)}, 740")
    A.i(f"s_cselect_b32 {s(sV)}, {s(sV)}, 0x40000000")
    A.i(f"s_cmp_lt_u32 {s(sT0)}, 54")
    A.i(f"s_cselect_b32 {s(rTMP)}, {s(rWD)}, {s(rWO)}")
    A.i(f"s_cselect_b32 {s(rTMP+1)}, {s(rWD+1)}, {s(rWO+1)}")
    A.i(f"s_cselect_b32 {s(rTMP+2)}, {s(rWD+2)}, {s(rWO+2)}")
    A.i(f"s_mov_b32 {s(rTMP+3)}, 0x00020000")
    A.i(f"s_cselect_b32 {s(sT2)}, 0, 54")
    A.i(f"s_sub_u32 {s(sT0)}, {s(sT0)}, {s(sT2)}")
    A.i(f"s_mul_i32 {s(sT0)}, {s(sT0)}, {32*1280}")
    A.i(f"s_lshl_b32 {s(sT1)}, {s(sT1)}, 7")
    A.i(f"s_add_u32 {s(sT0)}, {s(sT0)}, {s(sT1)}")
    A.i(f"v_lshrrev_b32 v{vA}, 3, v{vLANE}")
    A.i(f"v_mul_u32_u24 v{vA}, 1280, v{vA}")
    A.i(f"v_and_b32 v{vA+1}, 7, v{vLANE}")
    A.i(f"v_lshl_add_u32 v{vA}, v{vA+1}, 4, v{vA}")
    A.i(f"s_lshl_b32 {s(sT1)}, {s(sWAVE)}, 13")
    for i in range(4):
        A.i(f"s_add_u32 m0, {s(sT1)}, {RSCR - 16384 + sub*4096 + i*1024}")
        A.i(f"s_add_u32 {s(sT2)}, {s(sT0)}, {i*8*1280}")
        A.vm(f"buffer_load_dwordx4 v{vA}, {s(rTMP,4)}, {s(sT2)} offen lds", "rp")

def repack_finish(A, RSCR, vA, vD, sV, sub):
    A.c("---- repack finish")
    A.wait_vm("rp")
    A.i(f"v_lshrrev_b32 v{vA}, 2, v{vJ}")
    A.i(f"v_lshl_add_u32 v{vA}, v{vQ}, 3, v{vA}")
    A.i(f"v_lshlrev_b32 v{vA}, 7, v{vA}")
    A.i(f"v_and_b32 v{vA+1}, 3, v{vJ}")
    A.i(f"v_lshl_add_u32 v{vA}, v{vA+1}, 3, v{vA}")
    A.i(f"s_lshl_b32 {s(sT1)}, {s(sWAVE)}, 13")
    A.i(f"s_add_u32 {s(sT1)}, {s(sT1)}, {RSCR - 16384 + sub*4096}")
    A.i(f"v_add_u32 v{vA}, {s(sT1)}, v{vA}")
    for cb in range(4):
        A.ds(f"ds_read_b64_tr_b16 {v(vD+cb*4,2)}, v{vA} offset:{cb*32}", "rpf")
        A.ds(f"ds_read_b64_tr_b16 {v(vD+cb*4+2,2)}, v{vA} offset:{512 + cb*32}", "rpf")
    A.i(f"v_lshlrev_b32 v{vA+1}, 4, v{vLANE}")
    A.wait_lg("rpf")
    for cb in range(4):
        A.vm(f"buffer_store_dwordx4 {v(vD+cb*4,4)}, v{vA+1}, {s(rWS,4)}, {s(sV)} offen offset:{cb*1024} sc1", "rps")
```

```python
import sys, math
from asmlib import *

from gen_common import *
SLOT = 33792
REG = 16896
MISC = 4 * SLOT
STATS = MISC
CS1 = MISC + 1024
CS2 = MISC + 1536

def srd(A, r, p, nbytes, off=0):
    if off:
        A.i(f"s_add_u32 {s(r)}, {s(p)}, {off}")
        A.i(f"s_addc_u32 {s(r+1)}, {s(p+1)}, 0")
    else:
        A.i(f"s_mov_b32 {s(r)}, {s(p)}")
        A.i(f"s_mov_b32 {s(r+1)}, {s(p+1)}")
    A.i(f"s_mov_b32 {s(r+2)}, {nbytes}")
    A.i(f"s_mov_b32 {s(r+3)}, 0x00020000")

def prologue(A, name, nwg=256):
    A.raw(f".globl {name}")
    A.raw(".p2align 8")
    A.raw(f".type {name},@function")
    A.label(name)
    A.i(f"s_cmp_ge_u32 s2, {nwg}")
    A.i(f"s_cbranch_scc1 {name}_end")
    stamp(A, 0)
    A.i("s_load_dwordx16 s[16:31], s[0:1], 0")
    A.i("s_load_dwordx4 s[32:35], s[0:1], 64")
    A.i(f"s_and_b32 {s(sXCD)}, s2, 7")
    A.i(f"s_lshr_b32 {s(sIDX)}, s2, 3")
    A.i("v_lshrrev_b32 v4, 6, v0")
    A.i("v_and_b32 v1, 63, v0")
    A.i(f"v_readfirstlane_b32 {s(sWAVE)}, v4")
    A.i("v_and_b32 v2, 15, v1")
    A.i("v_lshrrev_b32 v3, 4, v1")
    A.i("s_waitcnt lgkmcnt(0)")
    srd(A, rX, pX, S_*D_*2)
    srd(A, rWQKV, pWQKV, D_*3*D_*2)
    srd(A, rWG, pWG, D_*F_*2)
    srd(A, rWU, pWU, D_*F_*2)
    srd(A, rWS, pWS, WS_USED)
    srd(A, rWD, pWD, F_*D_*2)
    srd(A, rWO, pWO, D_*D_*2)
    srd(A, rOUT, pOUT, S_*D_*2)

STAMPS = False
NOROT = False
DBG = set()
STAMP_REGS = [68, 16, 18, 20, 22, 24, 26, 28]
STAMP_OFF = 0x1600000
def stamp(A, idx, fine=True):
    if STAMPS:
        A.i(f"s_memrealtime {s(STAMP_REGS[idx],2)}")
STAMP_K = [0]
def stamp_flush(A):
    if not STAMPS: return
    A.i("s_waitcnt lgkmcnt(0)")
    srd(A, rX, pWS, 0x1700000)
    A.i(f"s_lshl_b32 {s(sT0)}, s2, 2")
    A.i(f"s_add_u32 {s(sT0)}, {s(sT0)}, {s(sWAVE)}")
    A.i(f"s_lshl_b32 {s(sT0)}, {s(sT0)}, 6")
    A.i(f"s_add_u32 {s(sT0)}, {s(sT0)}, {STAMP_OFF + STAMP_K[0]*0x10000}")
    STAMP_K[0] += 1
    A.i("v_mov_b32 v4, 0")
    A.i("s_mov_b64 exec, 1")
    for k, r in enumerate(STAMP_REGS if "clk" not in DBG else [68, 16, 18, 20, 22, 24, 26, 28, 30]):
        A.i(f"v_mov_b32 v5, {s(r)}")
        A.i(f"buffer_store_dword v5, v4, {s(rX,4)}, {s(sT0)} offen offset:{k*4}")
        A.i("s_nop 1")
    A.i("s_mov_b64 exec, -1")

FQ, FH, FO = 0, 4096, 8192
SPIN_MAX = 200000
EPW = 2
def make_dbg_srd(A):
    srd(A, rDBG, pDBG, 256)
def epoch_publish(A, vtmp):
    lab = A.newlabel("epub")
    A.i(f"s_xor_b32 {s(sT0)}, {s(sWAVE)}, {EPW}")
    A.i(f"s_add_u32 {s(sT0)}, {s(sT0)}, s2")
    A.i(f"s_cmp_lg_u32 {s(sT0)}, 0")
    A.i(f"s_cbranch_scc1 {lab}")
    A.i(f"s_memrealtime {s(sEPT,2)}")
    A.i("s_waitcnt lgkmcnt(0)")
    A.i(f"s_or_b32 {s(sEPT)}, {s(sEPT)}, 1")
    A.i(f"v_mov_b32 v{vtmp}, {s(sEPT)}")
    A.i(f"v_mov_b32 v{vtmp+1}, 0")
    A.i("s_mov_b64 exec, 1")
    A.i(f"buffer_store_dword v{vtmp}, v{vtmp+1}, {s(rDBG,4)}, 0 offen sc1")
    A.i("s_mov_b64 exec, -1")
    A.label(lab)
def epoch_issue(A, vaddr, vdst):
    A.i(f"v_mov_b32 v{vaddr}, 0")
    A.vm(f"buffer_load_dword v{vdst}, v{vaddr}, {s(rDBG,4)}, 0 offen sc1", "ep")
def epoch_check(A, vaddr, vdst):
    ok = A.newlabel("epok"); lp = A.newlabel("epspin")
    A.wait_vm("ep")
    A.i(f"v_cmp_eq_u32 vcc, 0, v{vdst}")
    A.i(f"s_cbranch_vccz {ok}")
    A.i(f"s_mov_b32 {s(sT4)}, {SPIN_MAX}")
    A.label(lp)
    A.i("s_sleep 2")
    A.i(f"buffer_load_dword v{vdst}, v{vaddr}, {s(rDBG,4)}, 0 offen sc1")
    A.i("s_waitcnt vmcnt(0)")
    A.i(f"v_cmp_eq_u32 vcc, 0, v{vdst}")
    A.i(f"s_cbranch_vccz {ok}")
    A.i(f"s_sub_u32 {s(sT4)}, {s(sT4)}, 1")
    A.i(f"s_cmp_lg_u32 {s(sT4)}, 0")
    A.i(f"s_cbranch_scc1 {lp}")
    A.label(ok)
    A.i(f"v_readfirstlane_b32 {s(sEP)}, v{vdst}")
def signal(A, base, srow, sslot, vtmp):
    A.i(f"s_lshl_b32 {s(sT4)}, {s(srow)}, 8")
    A.i(f"s_lshl_b32 {s(sT3)}, {s(sslot)}, 4")
    A.i(f"s_add_u32 {s(sT4)}, {s(sT4)}, {s(sT3)}")
    A.i(f"s_lshl_b32 {s(sT3)}, {s(sWAVE)}, 2")
    A.i(f"s_add_u32 {s(sT4)}, {s(sT4)}, {s(sT3)}")
    A.i(f"s_add_u32 {s(sT4)}, {s(sT4)}, {FLG_OFF + base}")
    A.i(f"v_mov_b32 v{vtmp}, {s(sEP)}")
    A.i(f"v_mov_b32 v{vtmp+1}, 0")
    A.i("s_mov_b64 exec, 1")
    A.vm(f"buffer_store_dword v{vtmp}, v{vtmp+1}, {s(rWS,4)}, {s(sT4)} offen sc1", "sig")
    A.i("s_mov_b64 exec, -1")
def poll_issue(A, vaddr, vdst, tag, n=1):
    A.i(f"s_mov_b32 {s(sT4)}, {FLG_OFF}")
    for k in range(n):
        A.vm(f"buffer_load_dwordx4 {v(vdst+4*k,4)}, v{vaddr}, {s(rWS,4)}, {s(sT4)} offen offset:{k*1024} sc1", tag)
def poll_check(A, vaddr, vdst, tag, n=1):
    ok = A.newlabel("pollok"); lp = A.newlabel("pollspin")
    def test():
        for k in range(4*n):
            A.i(f"v_xor_b32 v{vdst+k}, {s(sEP)}, v{vdst+k}")
        for k in range(1, 4*n):
            A.i(f"v_or_b32 v{vdst}, v{vdst}, v{vdst+k}")
        A.i(f"v_cmp_ne_u32 vcc, 0, v{vdst}")
        A.i(f"s_cbranch_vccz {ok}")
    A.wait_vm(tag)
    test()
    A.i(f"s_mov_b32 {s(sT3)}, {SPIN_MAX}")
    A.label(lp)
    A.i("s_sleep 2")
    A.i(f"s_mov_b32 {s(sT4)}, {FLG_OFF}")
    for k in range(n):
        A.i(f"buffer_load_dwordx4 {v(vdst+4*k,4)}, v{vaddr}, {s(rWS,4)}, {s(sT4)} offen offset:{k*1024} sc1")
    A.i("s_waitcnt vmcnt(0)")
    test()
    A.i(f"s_sub_u32 {s(sT3)}, {s(sT3)}, 1")
    A.i(f"s_cmp_lg_u32 {s(sT3)}, 0")
    A.i(f"s_cbranch_scc1 {lp}")
    A.label(ok)

def kernel_footer(A, name):
    A.label(f"{name}_end")
    A.i("s_endpgm")

def descriptor(name, vgpr=512, accum=256):
    return f""".p2align 6
.amdhsa_kernel {name}
  .amdhsa_next_free_vgpr {vgpr}
  .amdhsa_next_free_sgpr 102
  .amdhsa_accum_offset {accum}
  .amdhsa_group_segment_fixed_size 0
  .amdhsa_kernarg_size 80
  .amdhsa_user_sgpr_count 2
  .amdhsa_user_sgpr_kernarg_segment_ptr 1
  .amdhsa_system_sgpr_workgroup_id_x 1
.end_amdhsa_kernel
"""

vLANE, vJ, vQ = 1, 2, 3
vOFX = 4
vOFW = 8
vOFG = 12
vXLO, vXHI, vXLOc, vXHIc = 16, 17, 18, 19
vWLO, vWHI, vWLOc, vWHIc = 20, 21, 22, 23
vMEAN, vRSTD = 24, 28
vT = 32
vTXo, vTWo, vTGo = 160, 161, 162
TSCR = MISC + 4096
RSCR = MISC + 8192
REPACK = True
TBATCH = 1
TGATE = 1
EARLY = 2
GATE = 1
TP2 = 1
TRP = 3
HOOK = {}
sTS = 91
vONES = 36
vWR = 40
NRING = 6
vACC = 64
vST = 128
vCS1 = 144
vCS2 = 176
vXF = 192

def xfrag(T, rb):
    n = T * 4 + rb
    if n < 64:
        return a(n * 4, 4)
    return v(vXF + (n - 64) * 4, 4)

def mfma16(A, d, x, y, c):
    A.i(f"v_mfma_f32_16x16x32_bf16 {d}, {x}, {y}, {c}")

def phase12(A, ROT=True):
    A.c("==== phase 1/2 setup ====")
    A.i(f"s_and_b32 {s(sT0)}, {s(sXCD)}, 1")
    A.i(f"s_lshl_b32 {s(sT0)}, {s(sT0)}, 3")
    A.i(f"s_and_b32 {s(sT1)}, {s(sIDX)}, 7")
    A.i(f"s_add_u32 {s(sRT)}, {s(sT0)}, {s(sT1)}")
    A.i(f"s_lshr_b32 {s(sT0)}, {s(sXCD)}, 1")
    A.i(f"s_lshl_b32 {s(sT0)}, {s(sT0)}, 2")
    A.i(f"s_lshr_b32 {s(sT2)}, {s(sIDX)}, 3")
    A.i(f"s_add_u32 {s(sCT)}, {s(sT0)}, {s(sT2)}")
    A.i(f"s_lshr_b32 {s(sWM)}, {s(sWAVE)}, 1")
    A.i(f"s_and_b32 {s(sWN)}, {s(sWAVE)}, 1")
    if ROT:
        A.i(f"s_mul_i32 {s(sROT)}, {s(sT1)}, 5")
        A.i(f"s_lshr_b32 {s(sROT)}, {s(sROT)}, 2")
        A.i(f"s_mul_i32 {s(sT3)}, {s(sT2)}, 5")
        A.i(f"s_lshr_b32 {s(sT3)}, {s(sT3)}, 1")
        A.i(f"s_add_u32 {s(sROT)}, {s(sROT)}, {s(sT3)}")
        A.i(f"s_cmp_ge_u32 {s(sROT)}, 10")
        A.i(f"s_cselect_b32 {s(sT3)}, 10, 0")
        A.i(f"s_sub_u32 {s(sROT)}, {s(sROT)}, {s(sT3)}")
    else:
        A.i(f"s_mov_b32 {s(sROT)}, 0")
    A.i(f"v_and_b32 v{vT}, 3, v{vJ}")
    A.i(f"v_cmp_eq_u32 {s(sM1,2)}, 1, v{vT}")
    A.i(f"v_cmp_eq_u32 {s(sM2,2)}, 2, v{vT}")
    A.i(f"v_cmp_eq_u32 {s(sM3,2)}, 3, v{vT}")
    A.i(f"v_lshrrev_b32 v{vT+1}, 2, v{vJ}")
    A.i(f"v_cmp_eq_u32 {s(sDIAG,2)}, v{vT+1}, v{vQ}")
    A.i(f"v_cmp_eq_u32 {s(sJ0,2)}, 0, v{vJ}")
    A.i(f"v_lshrrev_b32 v{vT}, 3, v{vLANE}")
    A.i(f"v_lshrrev_b32 v{vT+1}, 1, v{vT}")
    A.i(f"v_lshlrev_b32 v{vT+1}, 5, v{vT+1}")
    A.i(f"v_and_b32 v{vT}, 1, v{vT}")
    A.i(f"v_add_u32 v{vT}, v{vT}, v{vT+1}")
    A.i(f"s_lshl_b32 {s(sT0)}, {s(sWAVE)}, 3")
    A.i(f"v_add_u32 v{vT}, {s(sT0)}, v{vT}")
    XS = 1408 if "xstride" in DBG else 1280
    if "xstride" in DBG: srd(A, rX, pWS, WS_USED)
    A.i(f"s_movk_i32 {s(sT1)}, {XS}")
    A.i(f"v_mul_lo_u32 v{vT}, v{vT}, {s(sT1)}")
    A.i(f"v_and_b32 v{vT+1}, 7, v{vLANE}")
    A.i(f"v_lshl_add_u32 v{vOFX}, v{vT+1}, 4, v{vT}")
    for r in range(1, 4):
        A.i(f"v_add_u32 v{vOFX+r}, {r*(2*XS-1056)}, v{vOFX}")
    A.i(f"s_lshl_b32 {s(sT0)}, {s(sWM)}, 2")
    A.i(f"s_lshl_b32 {s(sT1)}, {s(sWN)}, 3")
    A.i(f"s_add_u32 {s(sT0)}, {s(sT0)}, {s(sT1)}")
    A.i(f"v_lshlrev_b32 v{vT}, 4, v{vQ}")
    A.i(f"v_add_u32 v{vT}, {s(sT0)}, v{vT}")
    A.i(f"s_movk_i32 {s(sT1)}, 3840")
    A.i(f"v_mul_lo_u32 v{vT+1}, v{vT}, {s(sT1)}")
    A.i(f"v_lshl_add_u32 v{vOFW}, v{vJ}, 4, v{vT+1}")
    for r in range(1, 4):
        A.i(f"v_add_u32 v{vOFW+r}, {r*(3840-1056)}, v{vOFW}")
    A.i(f"s_movk_i32 {s(sT1)}, 3456")
    A.i(f"v_mul_lo_u32 v{vT+1}, v{vT}, {s(sT1)}")
    A.i(f"v_lshl_add_u32 v{vOFG}, v{vJ}, 4, v{vT+1}")
    for r in range(1, 4):
        A.i(f"v_add_u32 v{vOFG+r}, {r*(3456-1056)}, v{vOFG}")
    A.i(f"s_movk_i32 {s(sT1)}, 1056")
    A.i(f"v_mul_lo_u32 v{vT}, v{vJ}, {s(sT1)}")
    A.i(f"v_lshl_add_u32 v{vT}, v{vQ}, 4, v{vT}")
    A.i(f"s_lshl_b32 {s(sT0)}, {s(sWM)}, 9")
    A.i(f"s_lshl_b32 {s(sT2)}, {s(sWN)}, 8")
    A.i(f"s_add_u32 {s(sT3)}, {s(sT0)}, {s(sT2)}")
    A.i(f"v_add_u32 v{vXLO}, {s(sT3)}, v{vT}")
    A.i(f"s_sub_u32 {s(sT3)}, {s(sT0)}, {s(sT2)}")
    A.i(f"s_add_u32 {s(sT3)}, {s(sT3)}, 256")
    A.i(f"v_add_u32 v{vXHI}, {s(sT3)}, v{vT}")
    A.i(f"v_lshrrev_b32 v{vT}, 2, v{vJ}")
    A.i(f"v_and_b32 v{vT+1}, 1, v{vQ}")
    A.i(f"v_lshl_add_u32 v{vT}, v{vT+1}, 2, v{vT}")
    A.i(f"v_mul_lo_u32 v{vT}, v{vT}, {s(sT1)}")
    A.i(f"v_lshrrev_b32 v{vT+1}, 1, v{vQ}")
    A.i(f"v_lshl_add_u32 v{vT}, v{vT+1}, 8, v{vT}")
    A.i(f"v_and_b32 v{vT+1}, 3, v{vJ}")
    A.i(f"v_lshl_add_u32 v{vT+2}, v{vT+1}, 3, v{vT}")
    A.i(f"s_lshl_b32 {s(sT0)}, {s(sWN)}, 7")
    A.i(f"s_add_u32 {s(sT0)}, {s(sT0)}, {REG}")
    A.i(f"s_lshl_b32 {s(sT2)}, {s(sWM)}, 6")
    A.i(f"s_add_u32 {s(sT3)}, {s(sT0)}, {s(sT2)}")
    A.i(f"v_add_u32 v{vWLO}, {s(sT3)}, v{vT+2}")
    A.i(f"s_sub_u32 {s(sT3)}, {s(sT0)}, {s(sT2)}")
    A.i(f"s_add_u32 {s(sT3)}, {s(sT3)}, 64")
    A.i(f"v_add_u32 v{vWHI}, {s(sT3)}, v{vT+2}")
    A.i(f"v_mov_b32 v{vONES}, 0x3f803f80")
    for r in range(1, 4):
        A.i(f"v_mov_b32 v{vONES+r}, 0x3f803f80")
    A.i(f"s_mul_i32 {s(sA)}, {s(sRT)}, {128*XS}")
    A.i(f"s_lshl_b32 {s(sB)}, {s(sCT)}, 8")
    A.i(f"s_mul_i32 {s(sC)}, {s(sCT)}, 224")
    A.i(f"s_mul_i32 {s(sD)}, {s(sWAVE)}, {4*1056}")

    def issue_dma(st):
        slot = st % 4
        lst = st % 10
        ops = []
        ops.append(lambda: A.i(f"s_add_u32 {s(sE)}, {s(sROT)}, {lst}"))
        ops.append(lambda: A.i(f"s_cmp_ge_u32 {s(sE)}, 10"))
        ops.append(lambda: A.i(f"s_cselect_b32 {s(sF_)}, 10, 0"))
        ops.append(lambda: A.i(f"s_sub_u32 {s(sE)}, {s(sE)}, {s(sF_)}"))
        if st < 10:
            ops.append(lambda: A.i(f"s_lshl_b32 {s(sSOX)}, {s(sE)}, 7"))
            ops.append(lambda: A.i(f"s_add_u32 {s(sSOX)}, {s(sSOX)}, {s(sA)}"))
            ops.append(lambda: A.i(f"s_add_u32 m0, {s(sD)}, {slot*SLOT}"))
            ops.append(lambda: A.i(f"s_mul_i32 {s(sSOW)}, {s(sE)}, {64*3840}"))
            for r in range(4):
                ops.append(lambda r=r: A.vm(f"buffer_load_dwordx4 v{vOFX+r}, {s(rX,4)}, {s(sSOX)} offen offset:{r*1056} lds", ("dma", st)))
            ops.append(lambda: A.i(f"s_add_u32 m0, {s(sD)}, {slot*SLOT+REG}"))
            ops.append(lambda: A.i(f"s_add_u32 {s(sSOW)}, {s(sSOW)}, {s(sB)}"))
            for r in range(4):
                ops.append(lambda r=r: A.vm(f"buffer_load_dwordx4 v{vOFW+r}, {s(rWQKV,4)}, {s(sSOW)} offen offset:{r*1056} lds", ("dma", st)))
        else:
            ops.append(lambda: A.i(f"s_mul_i32 {s(sSOW)}, {s(sE)}, {64*3456}"))
            ops.append(lambda: A.i(f"s_add_u32 m0, {s(sD)}, {slot*SLOT}"))
            ops.append(lambda: A.i(f"s_add_u32 {s(sSOW)}, {s(sSOW)}, {s(sC)}"))
            for r in range(4):
                ops.append(lambda r=r: A.vm(f"buffer_load_dwordx4 v{vOFG+r}, {s(rWG,4)}, {s(sSOW)} offen offset:{r*1056} lds", ("dma", st)))
            ops.append(lambda: A.i(f"s_add_u32 m0, {s(sD)}, {slot*SLOT+REG+16}"))
            ops.append(lambda: A.i(f"s_nop 0"))
            for r in range(4):
                ops.append(lambda r=r: A.vm(f"buffer_load_dwordx4 v{vOFG+r}, {s(rWU,4)}, {s(sSOW)} offen offset:{r*1056} lds", ("dma", st)))
        return ops

    TOUCH = "touch" in DBG
    def issue_touch(d):
        ops = []
        if d < 5:
            ops.append(lambda: A.i(f"s_mov_b32 m0, {TSCR}"))
            ops.append(lambda: A.i(f"s_movk_i32 {s(sTS)}, {d*256}"))
            ops.append(lambda: A.vm(f"buffer_load_dword v{vTXo}, {s(rX,4)}, {s(sTS)} offen lds", ("t", d)))
            ops.append(lambda: A.i(f"s_mov_b32 {s(sTS)}, {d*128*3840}"))
            ops.append(lambda: A.vm(f"buffer_load_dword v{vTWo}, {s(rWQKV,4)}, {s(sTS)} offen lds", ("t", d)))
        else:
            ops.append(lambda: A.i(f"s_mov_b32 m0, {TSCR}"))
            ops.append(lambda: A.i(f"s_mov_b32 {s(sTS)}, {(d-5)*128*3456}"))
            ops.append(lambda: A.vm(f"buffer_load_dword v{vTGo}, {s(rWG,4)}, {s(sTS)} offen lds", ("t", d)))
            ops.append(lambda: A.vm(f"buffer_load_dword v{vTGo}, {s(rWU,4)}, {s(sTS)} offen lds", ("t", d)))
        return ops
    TD0 = 5
    SPLIT = "split" in DBG
    if "touchwait" in DBG:
        pass
    elif not SPLIT:
        for st in range(4):
            for op in issue_dma(st): op()
    else:
        Lt, Lw, Lj, Ltw = A.newlabel("ptouch"), A.newlabel("pwload"), A.newlabel("pjoin"), A.newlabel("ptw")
        vLW = 164
        A.i(f"v_lshlrev_b32 v{vT}, 4, v{vQ}")
        A.i(f"s_movk_i32 {s(sT1)}, 3840")
        A.i(f"v_mul_lo_u32 v{vT}, v{vT}, {s(sT1)}")
        A.i(f"v_lshl_add_u32 v{vLW}, v{vJ}, 4, v{vT}")
        for r in range(1, 4):
            A.i(f"v_add_u32 v{vLW+r}, {r*(3840-1056)}, v{vLW}")
        A.i(f"s_cmp_ge_u32 {s(sWAVE)}, 2")
        A.i(f"s_cbranch_scc1 {Lt}")
        A.i(f"s_cmp_eq_u32 {s(sWAVE)}, 1")
        A.i(f"s_cbranch_scc1 {Lw}")
        def xload(st):
            for w in range(4):
                A.i(f"s_add_u32 {s(sSOX)}, {s(sA)}, {st*128 + w*8*1280}")
                A.i(f"s_mov_b32 m0, {st*SLOT + w*4224}")
                A.i("s_nop 0")
                for r in range(4):
                    A.i(f"buffer_load_dwordx4 v{vOFX+r}, {s(rX,4)}, {s(sSOX)} offen offset:{r*1056} lds")
        EARLY = 4 if "early4" in DBG else 1
        for st in range(EARLY): xload(st)
        A.i(f"s_branch {Lj}")
        A.label(Lw)
        vLW = 164
        def wload(st):
            for w in range(4):
                A.i(f"s_add_u32 {s(sSOW)}, {s(sB)}, {(st*64 + 4*(w>>1) + 8*(w&1))*3840}")
                A.i(f"s_mov_b32 m0, {st*SLOT + REG + w*4224}")
                A.i("s_nop 0")
                for r in range(4):
                    A.i(f"buffer_load_dwordx4 v{vLW+r}, {s(rWQKV,4)}, {s(sSOW)} offen offset:{r*1056} lds")
        for st in range(EARLY): wload(st)
        A.i(f"s_branch {Lj}")
        A.label(Lt)
        A.i(f"s_mov_b32 m0, {TSCR}")
        A.i(f"s_cmp_eq_u32 {s(sWAVE)}, 3")
        A.i(f"s_cbranch_scc1 {Ltw}")
        A.i(f"v_and_b32 v{vT+1}, 31, v{vLANE}")
        A.i(f"s_and_b32 {s(sT0)}, {s(sXCD)}, 1")
        A.i(f"s_lshl_b32 {s(sT0)}, {s(sT0)}, 10")
        A.i(f"s_lshl_b32 {s(sT1)}, {s(sIDX)}, 5")
        A.i(f"s_add_u32 {s(sT0)}, {s(sT0)}, {s(sT1)}")
        A.i(f"v_add_u32 v{vT+1}, {s(sT0)}, v{vT+1}")
        A.i(f"s_movk_i32 {s(sT1)}, 1280")
        A.i(f"v_mul_lo_u32 v{vT+1}, v{vT+1}, {s(sT1)}")
        A.i(f"v_lshrrev_b32 v{vT}, 5, v{vLANE}")
        A.i(f"v_lshl_add_u32 v{vT}, v{vT}, 7, v{vT+1}")
        for d in range(5):
            A.i(f"s_movk_i32 {s(sTS)}, {d*256}")
            A.i(f"buffer_load_dword v{vT}, {s(rX,4)}, {s(sTS)} offen lds")
        def wlane(stride, qb):
            A.i(f"v_and_b32 v{vT}, 7, v{vLANE}")
            A.i(f"v_bfe_u32 v{vT+2}, v{vLANE}, 4, 2")
            A.i(f"v_lshlrev_b32 v{vT+2}, 6, v{vT+2}")
            A.i(f"v_bfe_u32 v{vT+1}, v{vLANE}, 3, 1")
            A.i(f"v_add_u32 v{vT+2}, v{vT+2}, v{vT+1}")
            A.i(f"s_lshl_b32 {s(sT0)}, {s(sIDX)}, 1")
            A.i(f"v_add_u32 v{vT+2}, {s(sT0)}, v{vT+2}")
            A.i(f"s_movk_i32 {s(sT1)}, {stride}")
            A.i(f"v_mul_lo_u32 v{vT+1}, v{vT+2}, {s(sT1)}")
            A.i(f"v_lshl_add_u32 v{vT+1}, v{vT}, 7, v{vT+1}")
            A.i(f"s_lshr_b32 {s(sT0)}, {s(sXCD)}, 1")
            A.i(f"s_mul_i32 {s(sT1)}, {s(sT0)}, {qb}")
            A.i(f"v_add_u32 v{vT}, {s(sT1)}, v{vT+1}")
        A.i(f"s_branch {Lj}")
        A.label(Ltw)
        wlane(3840, 1024)
        for d in range(3):
            A.i(f"s_mov_b32 {s(sTS)}, {d*256*3840}")
            A.i(f"buffer_load_dword v{vT}, {s(rWQKV,4)}, {s(sTS)} offen lds")
        A.label(Lj)
        A.vmq = [("dma", st) for st in range(EARLY) for _ in range(16)]
        late_loads = (EARLY, xload, wload)
    if TOUCH:
        A.i(f"s_lshl_b32 {s(sT0)}, {s(sWAVE)}, 4")
        A.i(f"v_add_u32 v{vT}, {s(sT0)}, v{vJ}")
        A.i(f"v_and_b32 v{vT+1}, 31, v{vT}")
        A.i(f"s_and_b32 {s(sT0)}, {s(sXCD)}, 1")
        A.i(f"s_lshl_b32 {s(sT0)}, {s(sT0)}, 10")
        A.i(f"s_lshl_b32 {s(sT1)}, {s(sIDX)}, 5")
        A.i(f"s_add_u32 {s(sT0)}, {s(sT0)}, {s(sT1)}")
        A.i(f"v_add_u32 v{vT+1}, {s(sT0)}, v{vT+1}")
        A.i(f"s_movk_i32 {s(sT1)}, 1280")
        A.i(f"v_mul_lo_u32 v{vT+1}, v{vT+1}, {s(sT1)}")
        A.i(f"v_lshrrev_b32 v{vT}, 5, v{vT}")
        A.i(f"v_lshl_add_u32 v{vTXo}, v{vT}, 7, v{vT+1}")
        A.i(f"s_lshl_b32 {s(sT0)}, {s(sWAVE)}, 3")
        A.i(f"v_and_b32 v{vT}, 7, v{vLANE}")
        A.i(f"v_add_u32 v{vT+1}, {s(sT0)}, v{vT}")
        A.i(f"v_lshrrev_b32 v{vT+2}, 4, v{vT+1}")
        A.i(f"v_lshlrev_b32 v{vT+2}, 6, v{vT+2}")
        A.i(f"v_bfe_u32 v{vT+1}, v{vT+1}, 3, 1")
        A.i(f"v_add_u32 v{vT+2}, v{vT+2}, v{vT+1}")
        A.i(f"s_lshl_b32 {s(sT0)}, {s(sIDX)}, 1")
        A.i(f"v_add_u32 v{vT+2}, {s(sT0)}, v{vT+2}")
        A.i(f"s_movk_i32 {s(sT1)}, 3840")
        A.i(f"v_mul_lo_u32 v{vT+1}, v{vT+2}, {s(sT1)}")
        A.i(f"v_lshl_add_u32 v{vT+1}, v{vT}, 7, v{vT+1}")
        A.i(f"s_lshr_b32 {s(sT0)}, {s(sXCD)}, 1")
        A.i(f"s_lshl_b32 {s(sT1)}, {s(sT0)}, 10")
        A.i(f"v_add_u32 v{vTWo}, {s(sT1)}, v{vT+1}")
        A.i(f"s_movk_i32 {s(sT1)}, 3456")
        A.i(f"v_mul_lo_u32 v{vT+1}, v{vT+2}, {s(sT1)}")
        A.i(f"v_lshl_add_u32 v{vT+1}, v{vT}, 7, v{vT+1}")
        A.i(f"s_mul_i32 {s(sT1)}, {s(sT0)}, 896")
        A.i(f"v_add_u32 v{vTGo}, {s(sT1)}, v{vT+1}")
        if "touchwait" in DBG:
            for d in range(5):
                for op in issue_touch(d): op()
            A.wait_vm(("t", TGATE))
            A.i("s_barrier")
            stamp(A, 6)
            for st in range(4):
                for op in issue_dma(st): op()
        if REPACK and not SPLIT and "touchwait" not in DBG:
            import p45
            p45.repack_issue(A, RSCR, vT, 96, 97)
        for d in range(TD0, 10 if "touchall" in DBG else TD0):
            for op in issue_touch(d): op()
    elif REPACK:
        import p45
        p45.repack_issue(A, RSCR, vT, 96, 97)

    bundles = []
    groups = []
    ring = [0]
    def wring():
        r = vWR + (ring[0] % NRING) * 4
        ring[0] += 1
        return r
    for st in range(10):
        for ks in range(2):
            T = 2 * st + ks
            xb = []
            for rb in range(4):
                base = vXLOc if rb < 2 else vXHIc
                xb.append(f"ds_read_b128 {xfrag(T, rb)}, v{base} offset:{(rb%2)*128 + ks*64}")
            bundles.append((st, ("x", T), xb))
            for c in range(4):
                r = wring()
                base = vWLOc if c < 2 else vWHIc
                ins = [f"ds_read_b64_tr_b16 {v(r,2)}, v{base} offset:{ks*512 + (c%2)*32}",
                       f"ds_read_b64_tr_b16 {v(r+2,2)}, v{base} offset:{8448 + ks*512 + (c%2)*32}"]
                bundles.append((st, ("w", T, c), ins))
                m = []
                first = (T == 0)
                for rb in range(4):
                    d = v(vACC + (c*4+rb)*4, 4)
                    m.append(f"v_mfma_f32_16x16x32_bf16 {d}, {v(r,4)}, {xfrag(T, rb)}, {'0' if first else d}")
                if c < 2:
                    d = v(vCS1 + c*4, 4)
                    m.append(f"v_mfma_f32_16x16x32_bf16 {d}, {v(r,4)}, {v(vONES,4)}, {'0' if first else d}")
                else:
                    rb = c - 2
                    d = v(vST + rb*8, 4)
                    m.append(f"v_mfma_f32_16x16x32_bf16 {d}, {v(vONES,4)}, {xfrag(T, rb)}, {'0' if first else d}")
                    d = v(vST + rb*8 + 4, 4)
                    m.append(f"v_mfma_f32_16x16x32_bf16 {d}, {xfrag(T, rb)}, {xfrag(T, rb)}, {'0' if first else d}")
                groups.append((st, [("x", T), ("w", T, c)], m))
    np1 = len(groups)
    for st in range(10, 20):
        for ks in range(2):
            T = 2 * (st - 10) + ks
            for b in range(7):
                r = wring()
                base = vWLOc if b < 4 else vWHIc
                bo = (b if b < 4 else b - 4) * 16
                ins = [f"ds_read_b64_tr_b16 {v(r,2)}, v{base} offset:{ks*512 + bo}",
                       f"ds_read_b64_tr_b16 {v(r+2,2)}, v{base} offset:{8448 + ks*512 + bo}"]
                bundles.append((st, ("g", T, b), ins))
                m = []
                first = (T == 0)
                for rb in range(4):
                    d = v(vACC + (b*4+rb)*4, 4)
                    m.append(f"v_mfma_f32_16x16x32_bf16 {d}, {v(r,4)}, {xfrag(T, rb)}, {'0' if first else d}")
                if b < 4:
                    d = v(vCS2 + b*4, 4)
                    m.append(f"v_mfma_f32_16x16x32_bf16 {d}, {v(r,4)}, {v(vONES,4)}, {'0' if first else d}")
                groups.append((st, [("g", T, b)], m))

    state = dict(bi=0, cur_stage=-1, pend=[])
    LOOK = 4

    def open_stage(st):
        A.c(f"--- open stage {st}")
        A.wait_vm(("dma", st))
        A.wait_lg(None)
        if "fine" in DBG and st in (0, 3, 6, 9): stamp(A, {0: 2, 3: 3, 6: 4, 9: 5}[st])
        if "clk" in DBG and STAMPS and st in (3, 9, 12, 18):
            k = {3: 0, 9: 1, 12: 2, 18: 3}[st]
            A.i(f"s_memrealtime {s(STAMP_REGS[1 + k] if k < 3 else STAMP_REGS[4], 2)}")
            A.i(f"s_memtime {s([24, 26, 28, 30][k], 2)}")
        if "nobar" not in DBG: A.i("s_barrier")
        slot = st % 4
        if st == 10:
            A.i(f"s_movk_i32 {s(sT1)}, 1056")
            A.i(f"v_lshrrev_b32 v{vT}, 2, v{vJ}")
            A.i(f"v_and_b32 v{vT+1}, 1, v{vQ}")
            A.i(f"v_lshl_add_u32 v{vT}, v{vT+1}, 2, v{vT}")
            A.i(f"v_mul_lo_u32 v{vT}, v{vT}, {s(sT1)}")
            A.i(f"v_lshrrev_b32 v{vT+1}, 1, v{vQ}")
            A.i(f"v_lshl_add_u32 v{vT}, v{vT+1}, 8, v{vT}")
            A.i(f"v_and_b32 v{vT+1}, 1, v{vJ}")
            A.i(f"v_lshl_add_u32 v{vT}, v{vT+1}, 3, v{vT}")
            A.i(f"v_bfe_u32 v{vT+1}, v{vJ}, 1, 1")
            A.i(f"s_movk_i32 {s(sT1)}, {REG+16}")
            A.i(f"v_mad_u32_u24 v{vT}, v{vT+1}, {s(sT1)}, v{vT}")
            A.i(f"s_mul_i32 {s(sT0)}, {s(sWN)}, {7*16}")
            A.i(f"s_mul_i32 {s(sT2)}, {s(sWM)}, {3*16}")
            A.i(f"s_add_u32 {s(sT3)}, {s(sT0)}, {s(sT2)}")
            A.i(f"v_add_u32 v{vWLO}, {s(sT3)}, v{vT}")
            A.i(f"s_lshl_b32 {s(sT2)}, {s(sWM)}, 6")
            A.i(f"s_sub_u32 {s(sT3)}, {s(sT0)}, {s(sT2)}")
            A.i(f"s_add_u32 {s(sT3)}, {s(sT3)}, 64")
            A.i(f"v_add_u32 v{vWHI}, {s(sT3)}, v{vT}")
        if st < 10:
            A.i(f"v_add_u32 v{vXLOc}, {slot*SLOT}, v{vXLO}")
            A.i(f"v_add_u32 v{vXHIc}, {slot*SLOT}, v{vXHI}")
        A.i(f"v_add_u32 v{vWLOc}, {slot*SLOT}, v{vWLO}")
        A.i(f"v_add_u32 v{vWHIc}, {slot*SLOT}, v{vWHI}")
        state["cur_stage"] = st
        if SPLIT and st == 0 and late_loads[0] < 4:
            E0, xl, wl = late_loads
            L1, L2 = A.newlabel("late"), A.newlabel("late")
            A.i(f"s_cmp_ge_u32 {s(sWAVE)}, 2")
            A.i(f"s_cbranch_scc1 {L2}")
            A.i(f"s_cmp_eq_u32 {s(sWAVE)}, 1")
            A.i(f"s_cbranch_scc1 {L1}")
            for t in range(E0, 4): xl(t)
            A.i(f"s_branch {L2}")
            A.label(L1)
            for t in range(E0, 4): wl(t)
            A.label(L2)
            A.vmq += [("dma", t) for t in range(E0, 4) for _ in range(16)]
        if (SPLIT or "touchwait" in DBG) and st == TBATCH:
            for d in range(5, 10):
                state["pend"] = issue_touch(d) + state["pend"] if False else state["pend"]
            pre = []
            for d in range(5, 10): pre += issue_touch(d)
            state["pend"] = pre + state["pend"]
        if (SPLIT or "touchwait" in DBG) and st == 7 and REPACK:
            import p45
            p45.repack_issue(A, RSCR, vT, 96, 97)
        if HOOK.get("open_stage"): HOOK["open_stage"](st, state)
        if st >= 1 and st + 3 < 20 and "nodma" not in DBG:
            state["pend"] += issue_dma(st + 3)
        if TOUCH and not SPLIT and "touchwait" not in DBG and "touchall" not in DBG and 2 <= st <= 6:
            state["pend"] += issue_touch(st + 3)

    def wcount_ahead(gi):
        n = 0
        for k in range(state["bi"]):
            if bundles[k][1][0] in ("w", "g"): n += 1
        return n - (gi + 1)

    def issue_bundle():
        st, tag, ins = bundles[state["bi"]]
        if st != state["cur_stage"]:
            open_stage(st)
        for x in ins:
            if "nods" in DBG: continue
            if "nox" in DBG and tag[0] == "x": continue
            A.ds(x, tag)
        state["bi"] += 1

    def run_groups(g0, g1, blimit):
        for gi in range(g0, g1):
            st, needs, m = groups[gi]
            while not all(any(bundles[k][1] == t for k in range(state["bi"])) for t in needs):
                issue_bundle()
            for t in needs: A.wait_lg(t)
            for mi, ins in enumerate(m):
                if "nomfma" not in DBG: A.i(ins)
                if mi == 0:
                    while state["bi"] < blimit and wcount_ahead(gi) < LOOK:
                        if bundles[state["bi"]][0] != state["cur_stage"]:
                            break
                        issue_bundle()
                elif mi == 3:
                    if state["bi"] < blimit and wcount_ahead(gi) < LOOK and bundles[state["bi"]][0] != state["cur_stage"]:
                        issue_bundle()
                        while state["bi"] < blimit and wcount_ahead(gi) < LOOK and bundles[state["bi"]][0] == state["cur_stage"]:
                            issue_bundle()
                else:
                    for _ in range(2):
                        if state["pend"]:
                            state["pend"].pop(0)()
    nb1 = sum(1 for b in bundles if b[0] < 10)
    run_groups(0, np1, nb1)
    while state["pend"]: state["pend"].pop(0)()

    A.c("==== P1 epilogue ====")
    if 'fine' not in DBG and 'clk' not in DBG: stamp(A, 1)
    A.nop(10)
    for rb in range(2):
        d1 = vST + rb*8; d2 = d1 + 4
        t = vT + rb*2
        A.i(f"v_cndmask_b32 v{d2}, v{d2}, v{d2+1}, {s(sM1,2)}")
        A.i(f"v_cndmask_b32 v{d2}, v{d2}, v{d2+2}, {s(sM2,2)}")
        A.i(f"v_cndmask_b32 v{d2}, v{d2}, v{d2+3}, {s(sM3,2)}")
        A.i(f"v_mul_f32 v{t}, {1.0/640}, v{d1}")
        A.i(f"v_mul_f32 v{d2}, {1.0/640}, v{d2}")
        A.i(f"v_fma_f32 v{d2}, -v{t}, v{t}, v{d2}")
        A.i(f"v_add_f32 v{d2}, 0x3727c5ac, v{d2}")
        A.i(f"v_rsq_f32 v{t+1}, v{d2}")
    A.i(f"s_lshl_b32 {s(sT0)}, {s(sWM)}, 9")
    A.i(f"s_lshl_b32 {s(sT2)}, {s(sWN)}, 8")
    A.i(f"s_add_u32 {s(sT3)}, {s(sT0)}, {s(sT2)}")
    A.i(f"s_add_u32 {s(sT3)}, {s(sT3)}, {STATS}")
    A.i(f"v_lshlrev_b32 v{vST}, 3, v{vJ}")
    A.i(f"v_add_u32 v{vST+1}, {s(sT3)}, v{vST}")
    A.i(f"s_sub_u32 {s(sT3)}, {s(sT0)}, {s(sT2)}")
    A.i(f"s_add_u32 {s(sT3)}, {s(sT3)}, {STATS+256}")
    A.i(f"v_add_u32 v{vST+2}, {s(sT3)}, v{vST}")
    A.i(f"s_mov_b64 exec, {s(sDIAG,2)}")
    A.ds(f"ds_write_b64 v{vST+1}, {v(vT,2)}")
    A.ds(f"ds_write_b64 v{vST+1}, {v(vT+2,2)} offset:128")
    A.i(f"s_mov_b64 exec, -1")
    A.i(f"s_lshl_b32 {s(sT0)}, {s(sWN)}, 8")
    A.i(f"s_lshl_b32 {s(sT2)}, {s(sWM)}, 7")
    A.i(f"s_add_u32 {s(sT3)}, {s(sT0)}, {s(sT2)}")
    A.i(f"s_add_u32 {s(sT3)}, {s(sT3)}, {CS1}")
    A.i(f"v_lshlrev_b32 v{vST}, 4, v{vQ}")
    A.i(f"v_add_u32 v{vST+3}, {s(sT3)}, v{vST}")
    A.i(f"s_sub_u32 {s(sT3)}, {s(sT0)}, {s(sT2)}")
    A.i(f"s_add_u32 {s(sT3)}, {s(sT3)}, {CS1+128}")
    A.i(f"v_add_u32 v{vST+4}, {s(sT3)}, v{vST}")
    A.i(f"s_mov_b64 exec, {s(sJ0,2)}")
    A.ds(f"ds_write_b128 v{vST+3}, {v(vCS1,4)}")
    A.ds(f"ds_write_b128 v{vST+3}, {v(vCS1+4,4)} offset:64")
    A.i(f"s_mov_b64 exec, -1")
    A.wait_lg(None)
    A.i("s_barrier")
    for rb in range(4):
        base = vST+1 if rb < 2 else vST+2
        A.ds(f"ds_read_b64 {v(vST+8+rb*2,2)}, v{base} offset:{(rb%2)*128}")
    for c in range(4):
        base = vST+3 if c < 2 else vST+4
        A.ds(f"ds_read_b128 {v(vCS1+c*4,4)}, v{base} offset:{(c%2)*64}")
    A.wait_lg(None)
    for rb in range(4):
        A.i(f"v_mov_b32 v{vMEAN+rb}, v{vST+8+rb*2}")
        A.i(f"v_mov_b32 v{vRSTD+rb}, v{vST+9+rb*2}")
    if REPACK:
        import p45
        p45.repack_finish(A, RSCR, vT, vWR, 97)
    cs = DH ** -0.5 * math.log2(math.e)
    import struct
    csbits = struct.unpack("<I", struct.pack("<f", cs))[0]
    A.i(f"s_cmp_lt_u32 {s(sCT)}, 5")
    A.i(f"s_cselect_b32 {s(sT0)}, {csbits:#x}, 1.0")
    for rb in range(4):
        A.i(f"v_mul_f32 v{vST+8+rb}, {s(sT0)}, v{vRSTD+rb}")
    A.i(f"v_lshlrev_b32 v{vST}, 14, v{vQ}")
    A.i(f"v_lshl_add_u32 v{vST}, v{vJ}, 4, v{vST}")
    A.i(f"s_lshl_b32 {s(sT0)}, {s(sCT)}, 19")
    A.i(f"s_lshl_b32 {s(sT1)}, {s(sWN)}, 18")
    A.i(f"s_add_u32 {s(sT0)}, {s(sT0)}, {s(sT1)}")
    A.i(f"s_lshl_b32 {s(sT1)}, {s(sRT)}, 10")
    A.i(f"s_add_u32 {s(sT0)}, {s(sT0)}, {s(sT1)}")
    A.i(f"s_lshl_b32 {s(sT1)}, {s(sWM)}, 9")
    A.i(f"s_add_u32 {s(sT0)}, {s(sT0)}, {s(sT1)}")
    if QKV_OFF: A.i(f"s_add_u32 {s(sT0)}, {s(sT0)}, {QKV_OFF}")
    A.i(f"s_cmp_ge_u32 {s(sCT)}, 15")
    A.i(f"s_cselect_b32 {s(sT0)}, 0x40000000, {s(sT0)}")
    for c in range(4):
        for pi in range(2):
            o = vST + 16 + ((c*2+pi) % 2) * 4
            o = vWR + ((c*2+pi) % 4) * 4
            for h in range(2):
                rb = 2*pi + h
                ac = vACC + (c*4+rb)*4
                for r in range(4):
                    A.i(f"v_fma_f32 v{ac+r}, -v{vMEAN+rb}, v{vCS1+c*4+r}, v{ac+r}")
                for r in range(4):
                    A.i(f"v_mul_f32 v{ac+r}, v{vST+8+rb}, v{ac+r}")
                A.i(f"v_cvt_pk_bf16_f32 v{o+2*h}, v{ac}, v{ac+1}")
                A.i(f"v_cvt_pk_bf16_f32 v{o+2*h+1}, v{ac+2}, v{ac+3}")
            A.i(f"s_lshl_b32 {s(sT1)}, {s(sWM)}, 1")
            A.i(f"s_add_u32 {s(sT1)}, {s(sT1)}, {c}")
            A.i(f"s_and_b32 {s(sT1)}, {s(sT1)}, 3")
            A.i(f"s_lshl_b32 {s(sT1)}, {s(sT1)}, 16")
            A.i(f"s_add_u32 {s(sT2)}, {s(sWN)}, {pi}")
            A.i(f"s_and_b32 {s(sT2)}, {s(sT2)}, 1")
            A.i(f"s_lshl_b32 {s(sT2)}, {s(sT2)}, 8")
            A.i(f"s_add_u32 {s(sT1)}, {s(sT1)}, {s(sT2)}")
            A.i(f"s_add_u32 {s(sT1)}, {s(sT1)}, {s(sT0)}")
            A.vm(f"buffer_store_dwordx4 {v(o,4)}, v{vST}, {s(rWS,4)}, {s(sT1)} offen sc1", "qkvst")
    return dict(run_groups=run_groups, groups=groups, np1=np1, bundles=bundles, state=state)

def phase2_rest(A, ctx):
    run_groups, groups, np1, bundles, state = ctx["run_groups"], ctx["groups"], ctx["np1"], ctx["bundles"], ctx["state"]
    if 'fine' not in DBG and 'clk' not in DBG: stamp(A, 2)
    run_groups(np1, len(groups), len(bundles))
    while state["pend"]: state["pend"].pop(0)()
    A.c("==== P2 epilogue ====")
    if 'fine' not in DBG and 'clk' not in DBG: stamp(A, 3)
    A.nop(10)
    A.i(f"s_mul_i32 {s(sT0)}, {s(sWN)}, {7*64}")
    A.i(f"s_add_u32 {s(sT0)}, {s(sT0)}, {CS2}")
    A.i(f"s_mul_i32 {s(sT2)}, {s(sWM)}, {3*64}")
    A.i(f"s_add_u32 {s(sT3)}, {s(sT0)}, {s(sT2)}")
    A.i(f"v_lshlrev_b32 v{vT}, 4, v{vQ}")
    A.i(f"v_add_u32 v{vT+1}, {s(sT3)}, v{vT}")
    A.i(f"s_lshl_b32 {s(sT2)}, {s(sWM)}, 8")
    A.i(f"s_sub_u32 {s(sT3)}, {s(sT0)}, {s(sT2)}")
    A.i(f"s_add_u32 {s(sT3)}, {s(sT3)}, 256")
    A.i(f"v_add_u32 v{vT+2}, {s(sT3)}, v{vT}")
    A.i(f"s_mov_b64 exec, {s(sJ0,2)}")
    for b in range(4):
        A.ds(f"ds_write_b128 v{vT+1}, {v(vCS2+b*4,4)} offset:{b*64}")
    A.i(f"s_mov_b64 exec, -1")
    A.wait_lg(None)
    A.i("s_barrier")
    def csreg(b): return vCS2 + b*4 if b < 4 else vWR + (b-4)*4
    for b in range(7):
        base = vT+1 if b < 4 else vT+2
        A.ds(f"ds_read_b128 {v(csreg(b),4)}, v{base} offset:{(b if b < 4 else b-4)*64}")
    A.i(f"v_cmp_gt_u32 vcc, 32, v{vLANE}")
    A.i("s_nop 1")
    vR2 = vWR + 12
    for pi in range(2):
        A.i(f"v_cndmask_b32 v{vR2+pi}, v{vRSTD+2*pi+1}, v{vRSTD+2*pi}, vcc")
        A.i(f"v_mul_f32 v{vR2+pi}, v{vR2+pi}, v{vR2+pi}")
    vO1, vO2, vQ1, vOT = vWR+14, vWR+15, vWR+16, vWR+17
    A.i(f"v_lshrrev_b32 v{vO1}, 5, v{vLANE}")
    A.i(f"s_mov_b32 {s(sT0)}, 55296")
    A.i(f"v_mul_lo_u32 v{vO1}, v{vO1}, {s(sT0)}")
    A.i(f"v_lshl_add_u32 v{vO1}, v{vJ}, 4, v{vO1}")
    A.i(f"v_and_b32 v{vQ1}, 1, v{vQ}")
    A.i(f"v_lshl_add_u32 v{vO2}, v{vQ1}, 3, v{vO1}")
    A.i(f"v_lshl_add_u32 v{vO1}, v{vQ1}, 8, v{vO1}")
    A.i(f"s_lshl_b32 {s(sT0)}, {s(sRT)}, 3")
    A.i(f"s_lshl_b32 {s(sT1)}, {s(sWM)}, 2")
    A.i(f"s_add_u32 {s(sT0)}, {s(sT0)}, {s(sT1)}")
    A.i(f"s_mul_i32 {s(sT0)}, {s(sT0)}, 55296")
    A.i(f"s_add_u32 {s(sT0)}, {s(sT0)}, {HB_OFF}")
    A.i(f"s_mul_i32 {s(sT4)}, {s(sCT)}, 14")
    A.i(f"s_mul_i32 {s(sT1)}, {s(sWN)}, 7")
    A.i(f"s_add_u32 {s(sT4)}, {s(sT4)}, {s(sT1)}")
    A.wait_lg(None)
    vX = vWR + 18
    for pi in range(2):
        for bp in range(4):
            blks = [2*bp, 2*bp+1] if bp < 3 else [6]
            for k, b in enumerate(blks):
                ra = vACC + (b*4 + 2*pi)*4
                rb_ = vACC + (b*4 + 2*pi+1)*4
                for r in range(4):
                    A.i(f"v_fma_f32 v{ra+r}, -v{vMEAN+2*pi}, v{csreg(b)+r}, v{ra+r}")
                    A.i(f"v_fma_f32 v{rb_+r}, -v{vMEAN+2*pi+1}, v{csreg(b)+r}, v{rb_+r}")
                A.i("s_nop 1")
                for r in range(4):
                    A.i(f"v_permlane32_swap_b32 v{ra+r}, v{rb_+r}")
                A.i("s_nop 1")
                for r in range(4):
                    A.i(f"v_mul_f32 v{ra+r}, v{ra+r}, v{rb_+r}")
                for r in range(4):
                    A.i(f"v_mul_f32 v{ra+r}, v{vR2+pi}, v{ra+r}")
                A.i(f"v_cvt_pk_bf16_f32 v{vX+2*k}, v{ra}, v{ra+1}")
                A.i(f"v_cvt_pk_bf16_f32 v{vX+2*k+1}, v{ra+2}, v{ra+3}")
            b0 = blks[0]
            if b0 < 4:
                A.i(f"s_mul_i32 {s(sT1)}, {s(sWM)}, 3")
                A.i(f"s_add_u32 {s(sT1)}, {s(sT1)}, {b0}")
            else:
                A.i(f"s_lshl_b32 {s(sT1)}, {s(sWM)}, 2")
                A.i(f"s_sub_u32 {s(sT1)}, {b0}, {s(sT1)}")
            A.i(f"s_add_u32 {s(sT1)}, {s(sT1)}, {s(sT4)}")
            A.i(f"s_add_u32 {s(sT2)}, {s(sWN)}, {pi}")
            A.i(f"s_and_b32 {s(sT2)}, {s(sT2)}, 1")
            A.i(f"s_mul_i32 {s(sT2)}, {s(sT2)}, {2*55296}")
            A.i(f"s_add_u32 {s(sT2)}, {s(sT2)}, {s(sT0)}")
            A.i(f"s_lshl_b32 {s(sT3)}, {s(sT1)}, 8")
            A.i(f"s_add_u32 {s(sT2)}, {s(sT2)}, {s(sT3)}")
            if len(blks) == 2:
                A.i("s_nop 0")
                A.i(f"v_permlane16_swap_b32 v{vX}, v{vX+2}")
                A.i(f"v_permlane16_swap_b32 v{vX+1}, v{vX+3}")
                A.i(f"v_add_u32 v{vOT}, {s(sT1)}, v{vQ1}")
                A.i(f"v_cmp_gt_u32 vcc, 216, v{vOT}")
                A.i("s_nop 1")
                A.i(f"v_cndmask_b32 v{vOT}, 0x40000000, v{vO1}, vcc")
                A.vm(f"buffer_store_dwordx4 {v(vX,4)}, v{vOT}, {s(rWS,4)}, {s(sT2)} offen sc1", "hst")
            else:
                A.i(f"s_cmp_lt_u32 {s(sT1)}, 216")
                A.i(f"s_cselect_b32 {s(sT3)}, 0, 0x40000000")
                A.i(f"v_or_b32 v{vOT}, {s(sT3)}, v{vO2}")
                A.vm(f"buffer_store_dwordx2 {v(vX,2)}, v{vOT}, {s(rWS,4)}, {s(sT2)} offen sc1", "hst")
            A.nop(2)

KNAME = "parallel_sum__sliding_block__glu_gated_bilinear__prompt_kernel"
def build(which):
    import p3, p45
    A = Asm()
    names = []
    if which == "k1":
        names = ["k1_kernel"]
    elif which == "k12":
        names = ["k1_kernel", "k2_kernel"]
    elif which == "k123":
        names = ["k1_kernel", "k2_kernel", "k3_kernel"]
    elif which in ("fused", "fused2"):
        names = [KNAME]
    for n in names:
        if n == KNAME:
            A.raw("; @launch grid=(256,1,1) block=(256,1,1) lds=163840")
        else:
            A.raw(f"; @launch kernel={n} grid=(256,1,1) block=(256,1,1) lds=163840")
    A.raw('.amdgcn_target "amdgcn-amd-amdhsa--gfx950"')
    A.raw(".text")
    if "k1_kernel" in names:
        prologue(A, "k1_kernel")
        ctx = phase12(A, ROT=not NOROT)
        phase2_rest(A, ctx)
        if 'fine' not in DBG and 'clk' not in DBG: stamp(A, 4)
        A.wait_all()
        if 'fine' not in DBG and 'clk' not in DBG: stamp(A, 5)
        stamp_flush(A)
        kernel_footer(A, "k1_kernel")
    if "k2_kernel" in names:
        A.vmq = []; A.lgq = []
        prologue(A, "k2_kernel")
        p3.p3_ids(A)
        for op in p3.p3_stage_kv(A, 8): op()
        p3.p3_setup(A)
        if 'fine' not in DBG and 'clk' not in DBG: stamp(A, 1)
        p3.p3_compute(A, st2=lambda k: stamp(A, k))
        A.wait_all()
        if 'fine' not in DBG and 'clk' not in DBG: stamp(A, 5)
        stamp_flush(A)
        kernel_footer(A, "k2_kernel")
    if "k3_kernel" in names:
        A.vmq = []; A.lgq = []
        prologue(A, "k3_kernel")
        p45.p45_setup(A)
        p45.p45(A)
        if 'fine' not in DBG and 'clk' not in DBG: stamp(A, 4)
        A.wait_all()
        if 'fine' not in DBG and 'clk' not in DBG: stamp(A, 5)
        stamp_flush(A)
        kernel_footer(A, "k3_kernel")
    if which == "fused":
        SC = "sc1"
        prologue(A, KNAME)
        vPA, vPD = 4, 8
        def open_stage_hook(st, state):
            if st == 8:
                make_dbg_srd(A)
                epoch_publish(A, vT)
            if st == 10:
                epoch_issue(A, 4, 5)
            if st == 13:
                epoch_check(A, 4, 5)
                A.i("s_nop 3")
                signal(A, FQ, sRT, sCT, 4)
            if st == 16:
                p3.p3_ids(A)
                A.i(f"v_min_u32 v{vPA}, 2, v{vQ}")
                A.i(f"s_sub_u32 {s(sT0)}, {s(p3.sQB)}, 2")
                A.i(f"v_add_u32 v{vPA}, {s(sT0)}, v{vPA}")
                A.i(f"v_max_i32 v{vPA}, 0, v{vPA}")
                A.i(f"v_lshlrev_b32 v{vPA}, 8, v{vPA}")
                A.i(f"v_lshl_add_u32 v{vPA}, v{vJ}, 4, v{vPA}")
                if FQ: A.i(f"v_add_u32 v{vPA}, {FQ}, v{vPA}")
                poll_issue(A, vPA, vPD, "pq")
            if st == 18:
                poll_check(A, vPA, vPD, "pq")
                state["pend"] += p3.p3_stage_kv(A, 5, SC)
        HOOK["open_stage"] = open_stage_hook
        ctx = phase12(A, ROT=not NOROT)
        phase2_rest(A, ctx)
        if 'fine' not in DBG and 'clk' not in DBG: stamp(A, 4)
        p45.p45_setup(A)
        p3.p3_setup(A, SC)
        vW1, vWD, vH1, vHD = 245, 208, 246, 248
        A.i(f"v_lshlrev_b32 v{vW1}, 4, v{vLANE}")
        poll_issue(A, vW1, vWD, "pw", n=4)
        A.i(f"s_lshl_b32 {s(sT0)}, {s(sRH)}, 8")
        A.i(f"s_add_u32 {s(sT0)}, {s(sT0)}, {FH}")
        A.i(f"v_lshlrev_b32 v{vH1}, 4, v{vJ}")
        A.i(f"v_add_u32 v{vH1}, {s(sT0)}, v{vH1}")
        def after_staged():
            signal(A, FH, sRT, sCT, 252)
        side = []
        side.append(lambda: poll_check(A, vW1, vWD, "pw", n=4))
        for n in range(3):
            side += p45.as_closures(A, p45.loads(n, "w", SC))
        side.append(lambda: poll_issue(A, vH1, vHD, "ph"))
        NPRE_A = 3
        late = []
        late.append(lambda: poll_check(A, vH1, vHD, "ph"))
        for n in range(NPRE_A):
            late += p45.as_closures(A, p45.loads(n, "a", SC))
        pad = [lambda: None] * max(0, 34 - len(side))
        p3.p3_compute(A, st_flags=SC, after_staged=after_staged, side=side + pad + late)
        if 'fine' not in DBG and 'clk' not in DBG: stamp(A, 5)
        vO1 = 246
        A.i(f"s_lshl_b32 {s(sT0)}, {s(sRH)}, 8")
        A.i(f"s_add_u32 {s(sT0)}, {s(sT0)}, {FO}")
        A.i(f"v_lshlrev_b32 v{vO1}, 4, v{vJ}")
        A.i(f"v_add_u32 v{vO1}, {s(sT0)}, v{vO1}")
        def after_first():
            signal(A, FO, p3.sQB, p3.sHP, 252)
        def wait_o():
            poll_check(A, vO1, vHD, "po")
        p45.p45(A, done_w=3, done_a=NPRE_A, wait_o=wait_o, sc1=SC, after_first=after_first,
                at_step={6: lambda: poll_issue(A, vO1, vHD, "po"), 8: lambda: stamp(A, 6)})
        stamp(A, 7)
        A.wait_all()
        stamp_flush(A)
        kernel_footer(A, KNAME)
    if which == "fused2":
        import p12
        SC = "sc1"
        prologue(A, KNAME)
        st_ = (lambda k: stamp(A, k))
        if "fine" in DBG:
            st_ = None
            for stg, k in ((0, 1), (1, 2), (2, 3), (3, 4), (5, 5), (7, 6), (9, 7)):
                p12.FINE[stg] = (lambda w, k=k: stamp(A, k) if w == "pre" else None)
        p12.setup(A)
        p12.setup_reads(A)
        LH, LJ = "L_helper", "L_join"
        A.i(f"s_cmp_ge_u32 {s(sWAVE)}, 2")
        A.i(f"s_cbranch_scc1 {LH}")
        p12.setup_loader(A)
        if GATE: A.i("s_barrier")
        for t in range(EARLY):
            for op in p12.dma_ops(A, t): op()
        def common_hook(st, pend, loader):
            if st == 6:
                make_dbg_srd(A)
                if not loader: epoch_publish(A, 32)
            if st == 10: epoch_issue(A, 8, 9)
            if st == 13:
                epoch_check(A, 8, 9)
                A.i("s_nop 3")
                if not loader: A.wait_vm("rps")
                signal(A, FQ, sRT, sCT, 8)
            if st == 16: p3.p3_ids(A)
        p12.run(A, True, hook=lambda st, pend: common_hook(st, pend, True), stamp=st_, EARLY=EARLY)
        A.i(f"s_branch {LJ}")
        A.label(LH)
        A.vmq = []; A.lgq = []
        p12.helper_touches_p1(A, GATE)
        if GATE: A.i("s_barrier")
        vPA, vPD = 4, 8
        def helper_hook(st, pend):
            if st == TP2: p12.helper_touches_p2(A)
            if st == TRP:
                for sub in range(2): p45.repack_issue(A, p12.RSCR, 32, 96 + sub, sub)
            common_hook(st, pend, False)
            if st == 16:
                A.i(f"v_min_u32 v{vPA}, 2, v{vQ}")
                A.i(f"s_sub_u32 {s(sT0)}, {s(p3.sQB)}, 2")
                A.i(f"v_add_u32 v{vPA}, {s(sT0)}, v{vPA}")
                A.i(f"v_max_i32 v{vPA}, 0, v{vPA}")
                A.i(f"v_lshlrev_b32 v{vPA}, 8, v{vPA}")
                A.i(f"v_lshl_add_u32 v{vPA}, v{vJ}, 4, v{vPA}")
                poll_issue(A, vPA, vPD, "pq")
            if st == 18:
                poll_check(A, vPA, vPD, "pq")
                pend += p3.p3_stage_kv(A, 5, SC)
        def repack_fin():
            for sub in range(2): p45.repack_finish(A, p12.RSCR, 32, p12.vWR, 96 + sub, sub)
        p12.run(A, False, hook=helper_hook, stamp=st_, repack=repack_fin)
        A.label(LJ)
        A.vmq = []; A.lgq = []
        p45.p45_setup(A)
        p3.p3_setup(A, SC)
        vW1, vWD, vH1, vHD = 245, 208, 246, 248
        A.i(f"v_lshlrev_b32 v{vW1}, 4, v{vLANE}")
        poll_issue(A, vW1, vWD, "pw", n=4)
        A.i(f"s_lshl_b32 {s(sT0)}, {s(sRH)}, 8")
        A.i(f"s_add_u32 {s(sT0)}, {s(sT0)}, {FH}")
        A.i(f"v_lshlrev_b32 v{vH1}, 4, v{vJ}")
        A.i(f"v_add_u32 v{vH1}, {s(sT0)}, v{vH1}")
        def after_staged():
            signal(A, FH, sRT, sCT, 252)
        side = []
        side.append(lambda: poll_check(A, vW1, vWD, "pw", n=4))
        for n in range(3):
            side += p45.as_closures(A, p45.loads(n, "w", SC))
        side.append(lambda: poll_issue(A, vH1, vHD, "ph"))
        NPRE_A = 3
        late = []
        late.append(lambda: poll_check(A, vH1, vHD, "ph"))
        for n in range(NPRE_A):
            late += p45.as_closures(A, p45.loads(n, "a", SC))
        pad = [lambda: None] * max(0, 34 - len(side))
        p3.p3_compute(A, st_flags=SC, after_staged=after_staged, side=side + pad + late)
        if "fine" not in DBG: stamp(A, 5)
        vO1 = 246
        A.i(f"s_lshl_b32 {s(sT0)}, {s(sRH)}, 8")
        A.i(f"s_add_u32 {s(sT0)}, {s(sT0)}, {FO}")
        A.i(f"v_lshlrev_b32 v{vO1}, 4, v{vJ}")
        A.i(f"v_add_u32 v{vO1}, {s(sT0)}, v{vO1}")
        def after_first():
            signal(A, FO, p3.sQB, p3.sHP, 252)
        def wait_o():
            poll_check(A, vO1, vHD, "po")
        p45.p45(A, done_w=3, done_a=NPRE_A, wait_o=wait_o, sc1=SC, after_first=after_first,
                at_step={6: lambda: poll_issue(A, vO1, vHD, "po"), 8: lambda: (stamp(A, 6) if "fine" not in DBG else None)})
        if "fine" not in DBG: stamp(A, 7)
        A.wait_all()
        stamp_flush(A)
        kernel_footer(A, KNAME)
    A.raw('.section .rodata,"a"')
    for n in names:
        A.raw(descriptor(n))
    return A

if __name__ == "__main__":
    if len(sys.argv) > 3 and "stamps" in sys.argv[3:]: STAMPS = True
    if "norot" in sys.argv[3:]: NOROT = True
    for x in sys.argv[3:]:
        if x.startswith("tb="): TBATCH = int(x[3:])
        if x.startswith("tg="): TGATE = int(x[3:])
        if x.startswith("early="): EARLY = int(x[6:])
        if x.startswith("gate="): GATE = int(x[5:])
        if x.startswith("tp2="): TP2 = int(x[4:])
        if x.startswith("trp="): TRP = int(x[4:])
        if x in ("nodma", "nods", "nox", "nobar", "nomfma", "touch", "xstride", "fine", "touchall", "split", "clk", "touchwait", "early4"): DBG.add(x)
    A = build(sys.argv[1])
    open(sys.argv[2], "w").write(A.text())
    print("instructions:", A.ninstr)
```
